```python
import torch

def _softmax(x, axis=-1):
    return torch.softmax(x, dim=axis)
def _gelu(x):
    return torch.nn.functional.gelu(x, approximate="tanh")
def _silu(x):
    return torch.nn.functional.silu(x)
def _sigmoid(x):
    return torch.sigmoid(x)
def _layernorm(x, axis=-1, eps=1e-5):
    m = x.mean(dim=axis, keepdim=True)
    v = x.var(dim=axis, keepdim=True, unbiased=False)
    return (x - m) / torch.sqrt(v + eps)
def _scatter_add(tgt, idx, src, axis=0):
    return tgt.clone().index_add_(axis, idx, src)
def _segment_sum(src, seg, n):
    out = torch.zeros((n,) + src.shape[1:], dtype=src.dtype)
    return out.index_add_(0, seg, src)
def _pad(x, pw):
    flat = tuple(v for pair in reversed(pw) for v in pair)
    return torch.nn.functional.pad(x, flat)

kernel_name = 'interleave_layers__ssm_conv_h3__mixer_s_mlp__prompt'

def setup_inputs():

    _w = (lambda a: (lambda t: t.to(torch.bfloat16) if t.is_floating_point() else t)(torch.as_tensor(a)))
    def _A_setup():
        B, S, D = 1, 2048, 640
        ks = 4
        return {
            "q": _w((lambda *s: torch.randn(*s, dtype=torch.bfloat16) * 0.05)(B, S, D)),
            "k": _w((lambda *s: torch.randn(*s, dtype=torch.bfloat16) * 0.8)(B, S, D)),
            "v": _w((lambda *s: torch.randn(*s, dtype=torch.bfloat16) * 0.8)(B, S, D)),
            "shift_k": _w((lambda *s: torch.randn(*s, dtype=torch.bfloat16) * 0.8)(D, ks) * 0.5),
            "ssm_k": _w((lambda *s: torch.randn(*s, dtype=torch.bfloat16) * 0.8)(D, S) * (1.0 / S ** 0.5)),
            "ssm_D": _w((lambda *s: torch.randn(*s, dtype=torch.bfloat16) * 0.8)(D)),
        }
    _A_in = _A_setup()

    def _B_setup():
        B, S, D, F = 1, 2048, 640, 1536
        return {
            "x":  _w((lambda *s: torch.randn(*s, dtype=torch.bfloat16) * 0.05)(B, S, D)),
            "w1": _w((lambda *s: torch.randn(*s, dtype=torch.bfloat16) * 3.2)(D, D) * (D ** -0.5)),
            "w2": _w((lambda *s: torch.randn(*s, dtype=torch.bfloat16) * 3.2)(D, D) * (D ** -0.5)),
            "w3": _w((lambda *s: torch.randn(*s, dtype=torch.bfloat16) * 3.2)(D, F) * (D ** -0.5)),
            "w4": _w((lambda *s: torch.randn(*s, dtype=torch.bfloat16) * 3.2)(F, D) * (F ** -0.5)),
        }
    _B_in = _B_setup()

    return {
        "A_q": _A_in["q"],
        "A_k": _A_in["k"],
        "A_v": _A_in["v"],
        "A_shift_k": _A_in["shift_k"],
        "A_ssm_k": _A_in["ssm_k"],
        "A_ssm_D": _A_in["ssm_D"],
        "B_x": _B_in["x"],
        "B_w1": _B_in["w1"],
        "B_w2": _B_in["w2"],
        "B_w3": _B_in["w3"],
        "B_w4": _B_in["w4"],
    }

def reference(A_q, A_k, A_v, A_shift_k, A_ssm_k, A_ssm_D, B_x, B_w1, B_w2, B_w3, B_w4):
    def _A_ref(q, k, v, shift_k, ssm_k, ssm_D):
        B, S, D = q.shape
        ks = shift_k.shape[-1]
        k_pad = _pad(k, ((0, 0), (ks - 1, 0), (0, 0)))
        k_shift = torch.zeros_like(k)
        for t in range(ks):
            k_shift = k_shift + k_pad[:, t:t + S, :] * shift_k[:, ks - 1 - t][None, None, :]
        kv = k_shift * v
        L = 2 * S
        kv_pad = _pad(kv, ((0, 0), (0, S), (0, 0)))
        kf_pad = _pad(ssm_k, ((0, 0), (0, S)))
        kv_f = (lambda x, axes=(-2,-1): torch.fft.rfft2(x.float(), dim=axes))(kv_pad[:, None, :, :], axes=(1, 2))
        kf_f = (lambda x, axes=(-2,-1): torch.fft.rfft2(x.float(), dim=axes))(kf_pad[:, None, :], axes=(1, 2))
        kf_f = (lambda x, *d: x.permute(*d))(kf_f, 1, 2, 0)
        y_f = kv_f * kf_f[None, :, :, :]
        y = (lambda x, s, axes=(-2,-1): torch.fft.irfft2(x, s=s, dim=axes).to(torch.bfloat16))(y_f, (1, L), axes=(1, 2))[:, 0, :S, :]
        y = y + kv * ssm_D[None, None, :]
        return q * y

    def _B_ref(x, w1, w2, w3, w4):
        B, S, D = x.shape
        h = _gelu(_layernorm(x, axis=-1) @ w1)
        c = D // 4
        g0 = _pad(h[:, :, 0*c:1*c], ((0, 0), (1, 0), (0, 0)))[:, :S, :]
        g1 = _pad(h[:, :, 1*c:2*c], ((0, 0), (0, 1), (0, 0)))[:, 1:, :]
        g2 = _pad(h[:, :, 2*c:3*c], ((0, 0), (2, 0), (0, 0)))[:, :S, :]
        g3 = _pad(h[:, :, 3*c:   ], ((0, 0), (0, 2), (0, 0)))[:, 2:, :]
        hs = torch.concatenate([g0, g1, g2, g3], axis=-1) @ w2
        x1 = x + hs
        h2 = _gelu(_layernorm(x1, axis=-1) @ w3) @ w4
        return x1 + h2

    x = A_q
    x = x + _A_ref(_layernorm(x, axis=-1), A_k, A_v, A_shift_k, A_ssm_k, A_ssm_D)
    x = x + _B_ref(_layernorm(x, axis=-1), B_w1, B_w2, B_w3, B_w4)
    x = x + _A_ref(_layernorm(x, axis=-1), A_k, A_v, A_shift_k, A_ssm_k, A_ssm_D)
    x = x + _B_ref(_layernorm(x, axis=-1), B_w1, B_w2, B_w3, B_w4)
    return x
```

```python
class Asm:
    def __init__(self):
        self.lines = []
        self.nlabel = 0
    def __call__(self, s=""):
        for l in s.split("\n"):
            self.lines.append(l)
    def label(self, base="L"):
        self.nlabel += 1
        return f"{base}_{self.nlabel}"
    def text(self):
        return "\n".join(self.lines) + "\n"

def kernel_header(name):
    return f""".globl {name}
.p2align 8
.type {name},@function
{name}:
"""

def kernel_desc(name, vgpr=256, sgpr=102, accum=256, kernarg=112, extra=""):
    return f""".p2align 6
.amdhsa_kernel {name}
  .amdhsa_next_free_vgpr {vgpr}
  .amdhsa_next_free_sgpr {sgpr}
  .amdhsa_accum_offset {accum}
  .amdhsa_group_segment_fixed_size 0
  .amdhsa_kernarg_size {kernarg}
  .amdhsa_user_sgpr_count 2
  .amdhsa_user_sgpr_kernarg_segment_ptr 1
  .amdhsa_system_sgpr_workgroup_id_x 1
{extra}.end_amdhsa_kernel
"""

def srd(a, d, base, nbytes):
    a(f"s_mov_b32 s{d}, s{base}")
    a(f"s_and_b32 s{d+1}, s{base+1}, 0xffff")
    a(f"s_mov_b32 s{d+2}, {hex(nbytes)}")
    a(f"s_mov_b32 s{d+3}, 0x00020000")
```

```python
from asmlib import *
from layout import *
from gen_pc import KA
import struct
def f2h(x): return hex(struct.unpack("<I", struct.pack("<f", x))[0])

RING = 140
LDS_Y = RING*1024
LDS_CS = LDS_Y + 4*2560
M_LDS = LDS_CS + 4*768
SEG = [(0,100), (100,200), (200,320), (320,560)]
A0C, A1C = -2.302208198, -0.1029432397
sWS, sQ, sOUT = 4, 8, 12
sI, sJ, sW, sMODE, sLAYER, sPH, sBUD, sFLAG = 16, 17, 18, 19, 20, 21, 22, 23
sK = 24
sMmain, sMmainS, sMhalo, sMhaloS, sMr02 = 36, 38, 40, 42, 44
sHZ = 46
sBND = 47
sT = 48
sSEG = 60
sST = 64
vL = [4,5,6]
vT16, vWf, vWs, vSTw, vSTr, vSTr3 = 7, 8, 9, 10, 11, 12
vF = [13,14,15,16]
vH = [17,18,19,20]
vSf, vSs, vHP, vX3, vH3w, vH4, vCS1, vCS3, vOut, vRD = 21, 22, 23, 24, 25, 26, 27, 28, 29, 31
vM, vR1, vA0, vA1, vRI, vNM = 32, 34, 36, 38, 30, 2
ACC4, YF, XAF, ACC, ACC3 = 40, 60, 80, 100, 80
PK, SW = 128, 140
AB, BB = 152, 192
STL = 232
TMP = 240
DEPTH = 10

def gen_M(a, stamps=False, pk=True, **opt):
    events = []
    ool = []
    e = a
    def bar(need, issue):
        events.append((need, issue)); a("s_barrier")
    def stamp(n):
        if stamps:
            a(f"s_memrealtime s[{sST+2*n}:{sST+2*n+1}]")
    def mstore(instrs):
        l1, l2 = a.label("M_slow"), a.label("M_back")
        a(f"s_cmp_lg_u32 s{sMODE}, 0\ns_cbranch_scc1 {l1}")
        for s in instrs: a(s.replace("{m}", ""))
        a(f"{l2}:")
        ool.append(f"{l1}:\n" + "\n".join(s.replace("{m}", "sc1") for s in instrs) + f"\ns_branch {l2}")
    def publish():
        a(f"s_add_u32 s{sPH}, s{sPH}, 1\nv_mov_b32 v1, s{sPH}\ns_waitcnt vmcnt(0)\ns_mov_b64 exec, 1")
        mstore([f"buffer_store_dword v1, off, s[{sWS}:{sWS+3}], s{sFLAG} {{m}}"])
        a("s_mov_b64 exec, -1")
    def poll(vaddr):
        l, o = a.label("M_poll"), a.label("M_pout")
        a(f"{l}:\nbuffer_load_dword v1, v{vaddr}, s[{sWS}:{sWS+3}], 0 offen sc1")
        a(f"s_sub_u32 s{sBUD}, s{sBUD}, 1\ns_cbranch_scc1 {o}\ns_waitcnt vmcnt(0)\nv_cmp_gt_u32 vcc, s{sPH}, v1\ns_cbranch_vccnz {l}\ns_add_u32 s{sBUD}, s{sBUD}, 1\n{o}:\ns_add_u32 s{sBUD}, s{sBUD}, 1" if False else
          f"s_cmp_eq_u32 s{sBUD}, 0\ns_cbranch_scc1 {o}\ns_sub_u32 s{sBUD}, s{sBUD}, 1\ns_waitcnt vmcnt(0)\nv_cmp_gt_u32 vcc, s{sPH}, v1\ns_cbranch_vccnz {l}\n{o}:")
    def poll_sent(vaddr, soff, dst):
        l, o = a.label("M_poll"), a.label("M_pout")
        a(f"{l}:\nbuffer_load_dwordx4 v[{dst}:{dst+3}], v{vaddr}, s[{sWS}:{sWS+3}], s{soff} offen sc1")
        a(f"s_cmp_eq_u32 s{sBUD}, 0\ns_cbranch_scc1 {o}\ns_sub_u32 s{sBUD}, s{sBUD}, 1\ns_waitcnt vmcnt(0)")
        a(f"v_max3_u32 v1, v{dst}, v{dst+1}, v{dst+2}\nv_max_u32 v1, v1, v{dst+3}\nv_cmp_eq_u32 vcc, -1, v1\ns_cbranch_vccnz {l}\n{o}:\ns_waitcnt vmcnt(0)")
    def lds_a(p):
        off = (p % RING)*1024
        return vL[off >> 16], off & 0xffff
    def unpack(dst, src, n):
        for i in range(n):
            a(f"v_lshlrev_b32 v{dst+2*i}, 16, v{src+i}\nv_and_b32 v{dst+2*i+1}, 0xffff0000, v{src+i}")
    def pack16(src):
        for i in range(10): a(f"v_cvt_pk_bf16_f32 v{PK+i}, v{src+2*i}, v{src+2*i+1}")
        swap16()
    def swap16():
        a(f"v_mov_b32 v{SW}, v{PK+8}\nv_mov_b32 v{SW+1}, v{PK+9}\nv_mov_b32 v{SW+2}, v{PK+8}\nv_mov_b32 v{SW+3}, v{PK+9}\ns_nop 0")
        a(f"v_permlane16_swap_b32 v{SW}, v{SW+2}\nv_permlane16_swap_b32 v{SW+1}, v{SW+3}")
    def part_stats():
        a(f"v_mov_b32 v{TMP}, 0\nv_mov_b32 v{TMP+1}, 0\nv_mov_b32 v{TMP+2}, 0x3f803f80")
        for i in range(10):
            a(f"v_dot2c_f32_bf16 v{TMP}, v{PK+i}, v{TMP+2}\nv_dot2c_f32_bf16 v{TMP+1}, v{PK+i}, v{PK+i}")
        a(f"s_nop 2\nv_permlane16_swap_b32 v{TMP}, v{TMP+1}\nv_add_f32 v{TMP}, v{TMP}, v{TMP+1}\nv_mov_b32 v{TMP+1}, v{TMP}\ns_nop 1")
        a(f"v_permlane32_swap_b32 v{TMP}, v{TMP+1}\nv_add_f32 v{TMP+3}, v{TMP}, v{TMP+1}")
    def store_stats(base):
        a(f"s_add_u32 s{sT}, s{sK}, {base}\ns_mov_b32 exec_hi, 0")
        mstore([f"buffer_store_dword v{TMP+3}, v{vSTw}, s[{sWS}:{sWS+3}], s{sT} offen {{m}}"])
        a("s_mov_b64 exec, -1")
    def store_slice(base):
        a(f"s_add_u32 s{sT}, s{sK}, {base}")
        mstore([f"buffer_store_dwordx4 v[{PK}:{PK+3}], v{vWf}, s[{sWS}:{sWS+3}], s{sT} offen {{m}}",
                f"buffer_store_dwordx4 v[{PK+4}:{PK+7}], v{vWf}, s[{sWS}:{sWS+3}], s{sT} offen offset:1024 {{m}}",
                f"s_mov_b64 exec, s[{sMr02}:{sMr02+1}]",
                f"buffer_store_dwordx4 v[{SW}:{SW+3}], v{vWs}, s[{sWS}:{sWS+3}], s{sT} offen {{m}}",
                "s_mov_b64 exec, -1"])
    def fin_stats16():
        a(f"v_add_f32 v1, v{STL}, v{STL+2}\nv_add_f32 v3, v{STL+1}, v{STL+3}\ns_nop 1\nv_permlane16_swap_b32 v1, v3\nv_add_f32 v1, v1, v3\nv_mov_b32 v3, v1\ns_nop 1")
        a("v_permlane32_swap_b32 v1, v3\nv_add_f32 v1, v1, v3\nv_mov_b32 v3, v1\ns_nop 1\nv_permlane16_swap_b32 v1, v3")
    def fin_stats32():
        a(f"v_add_f32 v1, v{STL}, v{STL+2}\nv_add_f32 v3, v{STL+1}, v{STL+3}\nv_add_f32 v{STL}, v{STL+4}, v{STL+6}\nv_add_f32 v{STL+1}, v{STL+5}, v{STL+7}")
        a(f"v_add_f32 v1, v1, v{STL}\nv_add_f32 v3, v3, v{STL+1}\nv_mov_b32 v{STL}, v1\nv_mov_b32 v{STL+1}, v3\ns_nop 0")
        a(f"v_permlane32_swap_b32 v1, v{STL}\nv_permlane32_swap_b32 v3, v{STL+1}\nv_add_f32 v1, v1, v{STL}\nv_add_f32 v3, v3, v{STL+1}")
    def mean_rstd(m, r):
        a(f"v_mul_f32 v{m}, {f2h(1/640)}, v1\nv_mul_f32 v3, {f2h(1/640)}, v3\nv_fma_f32 v3, -v{m}, v{m}, v3\nv_max_f32 v3, 0, v3")
        a(f"v_add_f32 v1, {f2h(1e-5)}, v3\nv_rsq_f32 v{r}, v1\ns_nop 0")
    def gelu_consts(r, m):
        a(f"v_mul_f32 v{vA0}, {f2h(A0C)}, v{r}\nv_mul_f32 v1, v{r}, v{r}\nv_mul_f32 v1, v1, v{r}\nv_mul_f32 v{vA1}, {f2h(A1C)}, v1\nv_rcp_f32 v{vRI}, v{r}\nv_sub_f32 v{vNM}, 0, v{m}")
    bc = lambda r: f"v[{r}:{r+1}]"
    def gelu(acc, cs, dst, npairs):
        for i0 in range(0, npairs, 2):
            P = [(acc+2*i, cs+2*i, dst+i, TMP+4*(i-i0)) for i in range(i0, min(i0+2, npairs))]
            if pk:
                for x,c,d,t in P: a(f"v_pk_fma_f32 v[{x}:{x+1}], v[{c}:{c+1}], {bc(vNM)}, v[{x}:{x+1}] op_sel_hi:[1,0,1]")
                for x,c,d,t in P: a(f"v_pk_mul_f32 v[{t}:{t+1}], v[{x}:{x+1}], v[{x}:{x+1}]")
                for x,c,d,t in P: a(f"v_pk_fma_f32 v[{t}:{t+1}], v[{t}:{t+1}], {bc(vA1)}, {bc(vA0)} op_sel_hi:[1,0,0]")
                for x,c,d,t in P: a(f"v_pk_mul_f32 v[{t}:{t+1}], v[{t}:{t+1}], v[{x}:{x+1}]")
                for x,c,d,t in P: a(f"v_exp_f32 v{t}, v{t}\nv_exp_f32 v{t+1}, v{t+1}")
                if len(P) == 1: a("s_nop 0")
                for x,c,d,t in P: a(f"v_pk_fma_f32 v[{t}:{t+1}], v[{t}:{t+1}], {bc(vRI)}, {bc(vRI)} op_sel_hi:[1,0,0]") if (x,c,d,t) != P[-1] or len(P) == 1 else a(f"v_pk_fma_f32 v[{t}:{t+1}], v[{t}:{t+1}], {bc(vRI)}, {bc(vRI)} op_sel_hi:[1,0,0]")
                for x,c,d,t in P: a(f"v_rcp_f32 v{t}, v{t}\nv_rcp_f32 v{t+1}, v{t+1}")
                if len(P) == 1: a("s_nop 0")
                for x,c,d,t in P: a(f"v_pk_mul_f32 v[{t}:{t+1}], v[{t}:{t+1}], v[{x}:{x+1}]")
                for x,c,d,t in P: a(f"v_cvt_pk_bf16_f32 v{d}, v{t}, v{t+1}")
            else:
                E = [(x+k, c+k, t+k) for x,c,d,t in P for k in range(2)]
                for x,c,t in E: a(f"v_fmac_f32 v{x}, v{c}, v{vNM}")
                for x,c,t in E: a(f"v_mul_f32 v{t}, v{x}, v{x}")
                for x,c,t in E: a(f"v_fma_f32 v{t}, v{t}, v{vA1}, v{vA0}")
                for x,c,t in E: a(f"v_mul_f32 v{t}, v{t}, v{x}")
                for x,c,t in E: a(f"v_exp_f32 v{t}, v{t}")
                for x,c,t in E: a(f"v_fma_f32 v{t}, v{t}, v{vRI}, v{vRI}")
                for x,c,t in E: a(f"v_rcp_f32 v{t}, v{t}")
                for x,c,t in E: a(f"v_mul_f32 v{t}, v{t}, v{x}")
                for x,c,d,t in P: a(f"v_cvt_pk_bf16_f32 v{d}, v{t}, v{t+1}")
    def gemm(ns, p0, nper, mf, accw, acc, bload, first_c0, need0, bars, endbar):
        for s in range(min(DEPTH, ns)): a(bload(s, BB+4*s))
        bar(need0, None)
        def aread(s, c):
            v, off = lds_a(p0 + s*nper + c); r = AB + (s&1)*4*nper + 4*c
            return f"ds_read_b128 v[{r}:{r+3}], v{v} offset:{off}"
        for s in range(2):
            for c in range(nper): a(aread(s, c))
        for s in range(ns):
            a(f"s_waitcnt vmcnt({min(DEPTH-1, ns-1-s)}) lgkmcnt({nper if s+1 < ns else 0})")
            if s in bars: bar(*bars[s])
            b = BB + 4*(s % DEPTH)
            for c in range(nper):
                r = AB + (s&1)*4*nper + 4*c; d = acc + accw*c
                cin = "0" if (s == 0 and first_c0) else f"v[{d}:{d+accw-1}]"
                a(f"{mf} v[{d}:{d+accw-1}], v[{r}:{r+3}], v[{b}:{b+3}], {cin}")
                if s+2 < ns: a(aread(s+2, c))
            if s+DEPTH < ns: a(bload(s+DEPTH, b))
        bar(*endbar)
    def bl16(vaddr_of):
        return lambda s, r: f"buffer_load_dwordx4 v[{r}:{r+3}], v{vaddr_of(s)}, s[{sWS}:{sWS+3}], s{sK+(s>>2)} offen offset:{(s&3)*1024} sc1"
    M16, M32 = "v_mfma_f32_16x16x32_bf16", "v_mfma_f32_32x32x16_bf16"

    a(kernel_header("main_kernel"))
    a("s_cmp_ge_u32 s2, 256\ns_cbranch_scc1 M_end")
    stamp(0)
    a(f"s_load_dwordx2 s[{sT}:{sT+1}], s[0:1], {KA['ws']}\ns_load_dwordx2 s[{sT+2}:{sT+3}], s[0:1], {KA['q']}\ns_load_dwordx4 s[{sT+4}:{sT+7}], s[0:1], {KA['out']}")
    a(f"v_lshrrev_b32 v1, 6, v0\nv_and_b32 v0, 63, v0\nv_lshlrev_b32 v{vL[0]}, 4, v0\nv_readfirstlane_b32 s{sW}, v1")
    a(f"s_and_b32 s{sI}, s2, 7\ns_lshr_b32 s3, s2, 3\ns_and_b32 s{sJ}, s3, 7\ns_lshr_b32 s3, s3, 3\ns_lshl_b32 s{sI}, s{sI}, 2\ns_add_u32 s{sI}, s{sI}, s3")
    a(f"s_and_b32 s3, s{sI}, 1\ns_lshl_b32 s3, s3, 3\ns_add_u32 s3, s3, s{sJ}   ; J")
    a(f"s_mov_b32 s{sLAYER}, 0")
    a(f"s_cmp_ge_u32 s{sW}, 4\ns_cbranch_scc1 M_loader")
    a(f"v_and_b32 v32, 15, v0   ; t\nv_lshrrev_b32 v33, 4, v0   ; g")
    a(f"s_lshl_b32 s{sT+8}, s{sI}, 2\ns_add_u32 s{sT+8}, s{sT+8}, s{sW}   ; tile16\ns_lshl_b32 s{sT+9}, s{sT+8}, 4")
    a(f"v_add_u32 v34, s{sT+9}, v32   ; token")
    a(f"s_mul_i32 s{sT+10}, s{sJ}, 160\nv_mul_u32_u24 v{vOut}, 1280, v34\nv_lshl_add_u32 v{vOut}, v33, 3, v{vOut}\nv_add_u32 v{vOut}, s{sT+10}, v{vOut}")
    a(f"s_mul_i32 s{sT+10}, s{sJ}, {80*4096}\ns_lshl_b32 s{sT+11}, s{sT+9}, 1\ns_add_u32 s{sT+10}, s{sT+10}, s{sT+11}\ns_add_u32 s{sT+10}, s{sT+10}, {Y}")
    a(f"v_lshrrev_b32 v35, 1, v0\nv_lshlrev_b32 v35, 12, v35\nv_and_b32 v36, 1, v0\nv_lshl_add_u32 v35, v36, 4, v35")
    a("s_waitcnt lgkmcnt(0)")
    srd(a, sWS, sT, WS_BYTES); srd(a, sQ, sT+2, S*D*2); srd(a, sOUT, sT+4, S*D*2)
    if stamps: a(f"s_mov_b32 s98, s{sT+6}\ns_mov_b32 s99, s{sT+7}")
    for c in range(5): a(f"buffer_load_dwordx2 v[{PK+2*c}:{PK+2*c+1}], v{vOut}, s[{sQ}:{sQ+3}], 0 offen offset:{32*c}")
    a(f"s_mul_i32 s{sT+11}, s{sW}, 2560\ns_add_u32 s{sT+11}, s{sT+11}, {LDS_Y}")
    for m in range(3):
        if m == 2: a("s_mov_b32 exec_hi, 0")
        a(f"s_add_u32 m0, s{sT+11}, {1024*m}\ns_nop 0\nbuffer_load_dwordx4 v35, s[{sWS}:{sWS+3}], s{sT+10} offen lds\ns_add_u32 s{sT+10}, s{sT+10}, {32*4096}")
    a(f"s_mul_i32 s{sT+10}, s{sW}, 768\ns_add_u32 s{sT+10}, s{sT+10}, {LDS_CS}\ns_mov_b32 m0, s{sT+10}\ns_mul_i32 s{sT}, s{sJ}, 320\ns_add_u32 s{sT}, s{sT}, {CS1}\ns_mov_b32 exec_lo, 0xfffff")
    a(f"buffer_load_dwordx4 v{vL[0]}, s[{sWS}:{sWS+3}], s{sT} offen lds")
    a(f"s_add_u32 m0, s{sT+10}, 320\ns_mul_i32 s{sT}, s3, 384\ns_add_u32 s{sT}, s{sT}, {CS3}\ns_mov_b32 exec_lo, 0xffffff")
    a(f"buffer_load_dwordx4 v{vL[0]}, s[{sWS}:{sWS+3}], s{sT} offen lds")
    a(f"s_getreg_b32 s{sT}, hwreg(HW_REG_XCC_ID)\ns_and_b32 s{sT}, s{sT}, 15\ns_add_u32 s{sT}, s{sT}, 1\nv_mov_b32 v1, s{sT}")
    a(f"s_lshl_b32 s{sT+1}, s{sI}, 3\ns_add_u32 s{sT+1}, s{sT+1}, s{sJ}\ns_lshl_b32 s{sT}, s{sT+1}, 2\ns_add_u32 s{sT}, s{sT}, {XID}\ns_mov_b64 exec, 1")
    a(f"s_cmp_lg_u32 s{sW}, 0\ns_cbranch_scc1 M_noxid\nbuffer_store_dword v1, off, s[{sWS}:{sWS+3}], s{sT} sc1\nM_noxid:\ns_mov_b64 exec, -1")
    a("s_barrier")
    a(f"s_lshl_b32 s{sFLAG}, s{sT+1}, 2\ns_add_u32 s{sFLAG}, s{sFLAG}, s{sW}\ns_lshl_b32 s{sFLAG}, s{sFLAG}, 2\ns_add_u32 s{sFLAG}, s{sFLAG}, {FLAGS}")
    a(f"s_mov_b32 s{sPH}, 0\ns_mov_b32 s{sBUD}, 400000")
    for n in range(12): a(f"s_mov_b32 s{sK+n}, {4096*n}")
    a(f"s_mov_b32 s{sMr02}, 0xffff\ns_mov_b32 s{sMr02+1}, 0xffff")
    a(f"v_add_u32 v{vL[1]}, 0x10000, v{vL[0]}\nv_add_u32 v{vL[2]}, 0x20000, v{vL[0]}")
    a(f"s_mul_i32 s{sT}, s{sT+8}, 20480\nv_add_u32 v{vT16}, s{sT}, v{vL[0]}\ns_lshl_b32 s{sT+2}, s{sJ}, 11\nv_add_u32 v{vWf}, s{sT+2}, v{vT16}")
    a(f"s_lshr_b32 s{sT+3}, s{sJ}, 1\ns_add_u32 s{sT+3}, s{sT+3}, 16\ns_lshl_b32 s{sT+3}, s{sT+3}, 10\ns_and_b32 s{sT+4}, s{sJ}, 1   ; j&1\ns_lshl_b32 s{sT+5}, s{sT+4}, 9\ns_add_u32 s{sT+5}, s{sT+5}, s{sT+3}")
    a(f"v_lshrrev_b32 v36, 1, v33   ; g>>1\nv_lshlrev_b32 v37, 8, v36\nv_lshl_add_u32 v37, v32, 4, v37\ns_add_u32 s{sT}, s{sT}, s{sT+5}\nv_add_u32 v{vWs}, s{sT}, v37")
    a(f"v_lshlrev_b32 v38, 6, v34   ; token*64\nv_and_b32 v39, 1, v33\nv_lshl_add_u32 v39, v39, 2, v38\ns_lshl_b32 s{sT}, s{sJ}, 3\nv_add_u32 v{vSTw}, s{sT}, v39\nv_lshl_add_u32 v{vSTr}, v33, 4, v38")
    a(f"v_and_b32 v40, 31, v0\nv_lshrrev_b32 v41, 5, v0   ; h\ns_lshr_b32 s{sT}, s{sI}, 1\ns_lshl_b32 s{sT}, s{sT}, 7\ns_lshl_b32 s{sT+6}, s{sW}, 5\ns_add_u32 s{sT}, s{sT}, s{sT+6}\nv_add_u32 v42, s{sT}, v40   ; token32")
    a(f"v_lshlrev_b32 v{vSTr3}, 6, v42\nv_lshl_add_u32 v{vSTr3}, v41, 5, v{vSTr3}")
    a(f"v_lshrrev_b32 v43, 4, v42   ; tile16\nv_lshlrev_b32 v44, 8, v41\nv_lshl_add_u32 v44, v32, 4, v44   ; h*256 + t*16")
    a(f"v_mul_u32_u24 v{vX3}, 20480, v43\nv_add_u32 v{vX3}, v{vX3}, v44\nv_add_u32 v{vX3}, {X1}, v{vX3}")
    a(f"v_mul_u32_u24 v{vH3w}, 49152, v43\nv_add_u32 v{vH3w}, v{vH3w}, v44\ns_mul_i32 s{sT}, s3, 3072\ns_add_u32 s{sT}, s{sT}, {H}\nv_add_u32 v{vH3w}, s{sT}, v{vH3w}")
    a(f"s_mul_i32 s{sT}, s{sT+8}, 49152\ns_add_u32 s{sT}, s{sT}, {H}\nv_add_u32 v{vH4}, s{sT}, v{vL[0]}")
    a(f"v_lshlrev_b32 v{vCS1}, 4, v33\nv_add_u32 v{vCS1}, s{sT+10}, v{vCS1}\nv_lshlrev_b32 v{vCS3}, 4, v41\ns_add_u32 s{sT}, s{sT+10}, 320\nv_add_u32 v{vCS3}, s{sT}, v{vCS3}")
    a(f"v_and_b32 v45, 7, v0   ; j'\nv_bfe_u32 v46, v0, 3, 1   ; second\nv_and_b32 v47, 15, v0")
    a(f"s_lshl_b32 s{sT}, s{sI}, 7\ns_add_u32 s{sT}, s{sT}, {FLAGS}\ns_lshl_b32 s{sT+6}, s{sW}, 2\ns_add_u32 s{sT+7}, s{sT}, s{sT+6}\nv_lshlrev_b32 v48, 4, v45\nv_add_u32 v{vF[0]}, s{sT+7}, v48")
    a(f"v_bfe_u32 v49, v45, 1, 1\nv_lshlrev_b32 v49, 1, v49\nv_subrev_u32 v49, 1, v49   ; -sign\nv_mul_i32_i24 v49, v49, v46\nv_add_u32 v49, s{sW}, v49\nv_max_i32 v49, 0, v49\nv_min_i32 v49, 3, v49")
    a(f"v_lshl_add_u32 v49, v49, 2, v48\nv_add_u32 v{vF[1]}, s{sT}, v49")
    a(f"s_and_b32 s{sT}, s{sI}, 30\ns_lshr_b32 s{sT+6}, s{sW}, 1\ns_add_u32 s{sT+7}, s{sT}, s{sT+6}\ns_lshl_b32 s{sT+7}, s{sT+7}, 7\ns_and_b32 s{sT+11}, s{sW}, 1\ns_lshl_b32 s{sT+11}, s{sT+11}, 3\ns_add_u32 s{sT+7}, s{sT+7}, s{sT+11}\ns_add_u32 s{sT+7}, s{sT+7}, {FLAGS}")
    a(f"v_lshl_add_u32 v49, v46, 2, v48\nv_add_u32 v{vF[2]}, s{sT+7}, v49")
    a(f"s_lshl_b32 s{sT+7}, s{sT}, 7\ns_and_b32 s{sT+11}, s{sI}, 1\ns_lshl_b32 s{sT+11}, s{sT+11}, 1\ns_add_u32 s{sT+11}, s{sT+11}, s{sT+6}\ns_lshl_b32 s{sT+11}, s{sT+11}, 2\ns_add_u32 s{sT+7}, s{sT+7}, s{sT+11}\ns_add_u32 s{sT+7}, s{sT+7}, {FLAGS}")
    a(f"v_lshlrev_b32 v49, 4, v47\nv_add_u32 v{vF[3]}, s{sT+7}, v49")
    a(f"s_lshl_b32 s{sT+7}, s{sT}, 5\ns_add_u32 s{sT+7}, s{sT+7}, {XID}\nv_lshlrev_b32 v49, 2, v47\nv_add_u32 v50, s{sT+7}, v49")
    a(f"s_cmp_eq_u32 s{sW}, 3\ns_cselect_b32 s{sT+6}, 1, 0   ; side\ns_cmp_eq_u32 s{sW}, 0\ns_cselect_b32 s{sBND}, 1, s{sT+6}")
    a(f"s_lshr_b32 s{sT}, s{sI}, 2\ns_mul_i32 s{sT}, s{sT}, 20480\ns_and_b32 s{sT+7}, s{sI}, 3\ns_lshl_b32 s{sT+7}, s{sT+7}, 1\ns_add_u32 s{sT+7}, s{sT+7}, s{sT+6}\ns_lshl_b32 s{sT+7}, s{sT+7}, 7\ns_add_u32 s{sT}, s{sT}, s{sT+7}\ns_add_u32 s{sT}, s{sT}, {HALO}")
    a(f"v_and_b32 v51, 1, v32\nv_lshl_add_u32 v51, v33, 1, v51\nv_lshlrev_b32 v51, 4, v51\nv_add_u32 v51, s{sT}, v51\nv_add_u32 v52, {HS}, v{vT16}")
    a(f"s_lshl_b32 s{sT+7}, s{sW}, 4\nv_add_u32 v53, s{sT+7}, v32")
    for q, sg in enumerate((1,-1,2,-2)):
        a(f"v_add_u32 v54, {-sg}, v53\nv_cmp_gt_u32 vcc, 64, v54\ns_nop 1\nv_cndmask_b32 v{vH[q]}, v51, v52, vcc")
    a(f"v_subrev_u32 v54, 20, v0\nv_cmp_gt_u32 vcc, 40, v54\nv_lshrrev_b32 v55, 3, v54\nv_and_b32 v56, 7, v54")
    a(f"v_cmp_gt_u32 s[{sT+2}:{sT+3}], 20, v0\nv_lshrrev_b32 v57, 2, v0\nv_and_b32 v58, 3, v0\nv_lshlrev_b32 v58, 1, v58\nv_add_u32 v58, s{sT+6}, v58   ; A set")
    a(f"v_cndmask_b32 v57, 0, v57, s[{sT+2}:{sT+3}]\nv_mov_b32 v59, s{sT+6}\nv_cndmask_b32 v58, v59, v58, s[{sT+2}:{sT+3}]")
    a(f"v_cndmask_b32 v55, v57, v55, vcc\nv_cndmask_b32 v56, v58, v56, vcc\nv_add_u32 v57, 2, v59\nv_cndmask_b32 v59, v59, v57, vcc   ; q")
    a(f"v_lshl_add_u32 v57, v59, 2, v55\nv_add_u32 v58, 16, v59\nv_cmp_gt_u32 vcc, 4, v55\ns_nop 1\nv_cndmask_b32 v57, v58, v57, vcc   ; kstep")
    a(f"v_lshlrev_b32 v57, 10, v57\nv_lshl_add_u32 v57, v56, 4, v57\nv_add_u32 v{vHP}, s{sT}, v57")
    a(f"s_lshr_b32 s{sT}, s{sJ}, 2\ns_add_u32 s{sT}, s{sT}, 1\ns_sub_u32 s{sT+1}, 0, s{sT}\ns_bitcmp1_b32 s{sJ}, 1\ns_cselect_b32 s{sT}, s{sT+1}, s{sT}   ; sigma\ns_cselect_b32 s{sT+6}, 1, 0")
    a(f"s_cselect_b32 s{sT+1}, -1, 1\ns_add_u32 s{sT+1}, s{sT+1}, s{sI}\ns_cmp_gt_u32 s{sT+1}, 31\ns_cselect_b32 s{sHZ}, 1, 0\ns_and_b32 s{sT+1}, s{sT+1}, 31")
    a(f"s_lshr_b32 s{sT+7}, s{sT+1}, 2\ns_mul_i32 s{sT+7}, s{sT+7}, 20480\ns_and_b32 s{sT+1}, s{sT+1}, 3\ns_lshl_b32 s{sT+1}, s{sT+1}, 1\ns_add_u32 s{sT+1}, s{sT+1}, s{sT+6}\ns_lshl_b32 s{sT+1}, s{sT+1}, 7\ns_add_u32 s{sT+7}, s{sT+7}, s{sT+1}\ns_add_u32 s{sT+7}, s{sT+7}, {HALO}")
    a(f"v_add_u32 v54, s{sT}, v53   ; T'\nv_cmp_gt_u32 vcc, 64, v54\nv_lshrrev_b32 v55, 4, v54\nv_and_b32 v56, 15, v54\nv_and_b32 v57, 1, v54   ; tau")
    a(f"s_mov_b64 s[{sMmain}:{sMmain+1}], vcc\ns_not_b64 s[{sMhalo}:{sMhalo+1}], vcc\ns_and_b64 s[{sMmainS}:{sMmainS+1}], vcc, s[{sMr02}:{sMr02+1}]\ns_andn2_b64 s[{sMhaloS}:{sMhaloS+1}], s[{sMr02}:{sMr02+1}], vcc")
    a(f"s_mul_i32 s{sT+1}, s{sI}, 81920\ns_add_u32 s{sT+1}, s{sT+1}, {HS}\nv_mul_u32_u24 v55, 20480, v55\nv_lshl_add_u32 v55, v56, 4, v55\nv_add_u32 v55, s{sT+1}, v55")
    a(f"s_lshl_b32 s{sT+2}, s{sJ}, 11\nv_lshl_add_u32 v56, v33, 8, v55\nv_lshl_add_u32 v58, v33, 1, v57\nv_lshlrev_b32 v58, 4, v58\nv_add_u32 v58, s{sT+7}, v58\nv_cndmask_b32 v56, v58, v56, vcc\nv_add_u32 v{vSf}, s{sT+2}, v56")
    a(f"s_lshr_b32 s{sT+3}, s{sJ}, 1\ns_add_u32 s{sT+3}, s{sT+3}, 16\ns_lshl_b32 s{sT+3}, s{sT+3}, 10\ns_lshl_b32 s{sT+2}, s{sT+4}, 1\nv_add_u32 v59, s{sT+2}, v36   ; g'")
    a(f"v_lshl_add_u32 v56, v59, 8, v55\nv_lshl_add_u32 v58, v59, 1, v57\nv_lshlrev_b32 v58, 4, v58\nv_add_u32 v58, s{sT+7}, v58\nv_cndmask_b32 v56, v58, v56, vcc\nv_add_u32 v{vSs}, s{sT+3}, v56")
    a(f"v_bfe_u32 v54, v0, 2, 2\nv_lshl_add_u32 v54, v33, 2, v54\nv_lshlrev_b32 v54, 5, v54\nv_and_b32 v55, 3, v0\nv_lshl_add_u32 v54, v55, 3, v54\ns_mul_i32 s{sT}, s{sW}, 2560\ns_add_u32 s{sT}, s{sT}, {LDS_Y}\nv_add_u32 v54, s{sT}, v54")
    a(f"M_xp:\nbuffer_load_dword v1, v50, s[{sWS}:{sWS+3}], 0 offen sc1\ns_cmp_eq_u32 s{sBUD}, 0\ns_cbranch_scc1 M_xo\ns_sub_u32 s{sBUD}, s{sBUD}, 1\ns_waitcnt vmcnt(0)\nv_cmp_eq_u32 vcc, 0, v1\ns_cbranch_vccnz M_xp\nM_xo:\ns_waitcnt vmcnt(0)")
    for c in range(5): a(f"ds_read_b64_tr_b16 v[{TMP+2*c}:{TMP+2*c+1}], v54 offset:{512*c}")
    a(f"v_readfirstlane_b32 s{sT}, v1\ns_nop 1\nv_cmp_ne_u32 vcc, s{sT}, v1\ns_nop 3\ns_cmp_lg_u64 vcc, 0\ns_cselect_b32 s{sMODE}, 1, {1 if opt.get('force_slow') else 0}")
    a("s_waitcnt lgkmcnt(0)")
    unpack(YF, TMP, 10)
    stamp(1)
    a("M_layer:")
    part_stats(); store_stats(STX)
    unpack(ACC, PK, 10)
    poll_sent(vSTr, sT, STL)
    fin_stats16(); mean_rstd(vM, vR1)
    a(f"v_mul_f32 v{vNM}, v{vM}, v{vR1}\nv_sub_f32 v{vNM}, 0, v{vNM}")
    for i in range(10):
        x, t, y = ACC+2*i, XAF+2*i, YF+2*i
        a(f"v_pk_fma_f32 v[{t}:{t+1}], v[{x}:{x+1}], {bc(vR1)}, {bc(vNM)} op_sel_hi:[1,0,0]")
        a(f"v_pk_fma_f32 v[{t}:{t+1}], v[{t}:{t+1}], v[{y}:{y+1}], v[{x}:{x+1}]")
    pack16(XAF); store_slice(XA)
    part_stats(); store_stats(STA)
    unpack(XAF, PK, 10)
    a(f"v_add_u32 v{vRD}, {XA}, v{vT16}\ns_add_u32 s{sT+1}, s{sK}, {STA}")
    publish()
    stamp(2)
    poll(vF[0])
    a(f"buffer_load_dwordx4 v[{STL}:{STL+3}], v{vSTr}, s[{sWS}:{sWS+3}], s{sT+1} offen sc1")
    gemm(20, 0, 5, M16, 4, ACC, bl16(lambda s: vRD), True, 100, {}, (None, 240))
    for c in range(5): a(f"ds_read_b128 v[{AB+4*c}:{AB+4*c+3}], v{vCS1} offset:{64*c}")
    fin_stats16(); mean_rstd(vM, vR1)
    a(f"v_mul_f32 v3, v3, v{vR1}\nv_mul_f32 v3, v3, v{vR1}\nv_add_f32 v3, {f2h(1e-5)}, v3\nv_rsq_f32 v3, v3\ns_nop 0\nv_mul_f32 v3, v3, v{vR1}")
    gelu_consts(3, vM)
    a("s_waitcnt lgkmcnt(0)")
    gelu(ACC, AB, PK, 10)
    swap16()
    mstore([f"s_mov_b64 exec, s[{sMmain}:{sMmain+1}]",
            f"buffer_store_dwordx4 v[{PK}:{PK+3}], v{vSf}, s[{sWS}:{sWS+3}], s{sK} offen {{m}}",
            f"buffer_store_dwordx4 v[{PK+4}:{PK+7}], v{vSf}, s[{sWS}:{sWS+3}], s{sK} offen offset:1024 {{m}}",
            f"s_mov_b64 exec, s[{sMmainS}:{sMmainS+1}]",
            f"buffer_store_dwordx4 v[{SW}:{SW+3}], v{vSs}, s[{sWS}:{sWS+3}], s{sK} offen {{m}}"])
    a(f"s_cmp_eq_u64 s[{sMhalo}:{sMhalo+1}], 0\ns_cbranch_scc1 M_nohalo")
    a(f"s_mov_b64 exec, s[{sMhalo}:{sMhalo+1}]\ns_cmp_eq_u32 s{sHZ}, 0\ns_cbranch_scc1 M_hnz\ns_nop 1")
    for r in list(range(PK, PK+8)) + list(range(SW, SW+4)): a(f"v_mov_b32 v{r}, 0")
    a("M_hnz:")
    a(f"buffer_store_dwordx4 v[{PK}:{PK+3}], v{vSf}, s[{sWS}:{sWS+3}], s{sK} offen sc1\nbuffer_store_dwordx4 v[{PK+4}:{PK+7}], v{vSf}, s[{sWS}:{sWS+3}], s{sK} offen offset:1024 sc1")
    a(f"s_mov_b64 exec, s[{sMhaloS}:{sMhaloS+1}]\nbuffer_store_dwordx4 v[{SW}:{SW+3}], v{vSs}, s[{sWS}:{sWS+3}], s{sK} offen sc1")
    a(f"s_add_u32 s{sPH}, s{sPH}, 1\ns_mov_b64 exec, 1\nv_mov_b32 v1, s{sPH}\ns_waitcnt vmcnt(3)\ns_branch M_hpub")
    a(f"M_nohalo:\ns_add_u32 s{sPH}, s{sPH}, 1\ns_mov_b64 exec, 1\nv_mov_b32 v1, s{sPH}\ns_waitcnt vmcnt(0)\nM_hpub:")
    mstore([f"buffer_store_dword v1, off, s[{sWS}:{sWS+3}], s{sFLAG} {{m}}"])
    a("s_mov_b64 exec, -1")
    a(f"v_mul_f32 v{vNM}, v{vM}, v{vR1}\nv_sub_f32 v{vNM}, 0, v{vNM}")
    for i in range(10): a(f"v_pk_fma_f32 v[{ACC+2*i}:{ACC+2*i+1}], v[{XAF+2*i}:{XAF+2*i+1}], {bc(vR1)}, {bc(vNM)} op_sel_hi:[1,0,0]")
    stamp(3)
    poll(vF[1])
    a(f"s_cmp_eq_u32 s{sBND}, 0\ns_cbranch_scc1 M_nohp")
    poll_sent(vHP, sK, STL)
    a("M_nohp:")
    gemm(20, 100, 5, M16, 4, ACC, bl16(lambda s: vH[s>>2] if s < 16 else vH[s-16]), False, 200, {}, (None, 340))
    a("s_nop 6")
    pack16(ACC); store_slice(X1)
    part_stats(); store_stats(ST1)
    unpack(ACC4, PK, 10)
    for i in range(10): a(f"v_pk_add_f32 v[{ACC4+2*i}:{ACC4+2*i+1}], v[{ACC4+2*i}:{ACC4+2*i+1}], v[{XAF+2*i}:{XAF+2*i+1}]")
    a(f"s_add_u32 s{sT+1}, s{sK}, {ST1}")
    publish()
    stamp(4)
    poll(vF[2])
    a(f"buffer_load_dwordx4 v[{STL}:{STL+3}], v{vSTr3}, s[{sWS}:{sWS+3}], s{sT+1} offen sc1\nbuffer_load_dwordx4 v[{STL+4}:{STL+7}], v{vSTr3}, s[{sWS}:{sWS+3}], s{sT+1} offen offset:16 sc1")
    bl3 = lambda s, r: f"buffer_load_dwordx4 v[{r}:{r+3}], v{vX3}, s[{sWS}:{sWS+3}], s{sK+(s>>3)} offen offset:{(s&7)*512} sc1"
    gemm(40, 200, 3, M32, 16, ACC3, bl3, True, 320, {}, (None, 460))
    for t in range(3):
        for q in range(4): a(f"ds_read_b128 v[{AB+16*t+4*q}:{AB+16*t+4*q+3}], v{vCS3} offset:{128*t+32*q}")
    fin_stats32(); mean_rstd(vM, vR1); gelu_consts(vR1, vM)
    a("s_waitcnt lgkmcnt(0)")
    for t in range(3):
        gelu(ACC3+16*t, AB+16*t, PK+8*t, 8)
        mstore([f"buffer_store_dwordx4 v[{PK+8*t+4*P}:{PK+8*t+4*P+3}], v{vH3w}, s[{sWS}:{sWS+3}], s{sK} offen offset:{1024*t+512*P} {{m}}" for P in range(2)])
    publish()
    stamp(5)
    poll(vF[3])
    g4 = opt.get("g4bars", {8:(None,500), 16:(None,540), 20:(None,560), 26:(500,None), 34:(540,None), 42:(560,None)})
    gemm(48, 320, 5, M16, 4, ACC4, bl16(lambda s: vH4), False, 460, g4, (None, 700))
    a("s_nop 6")
    for i in range(10): a(f"v_cvt_pk_bf16_f32 v{PK+i}, v{ACC4+2*i}, v{ACC4+2*i+1}")
    stamp(6)
    a(f"s_cmp_eq_u32 s{sLAYER}, 1\ns_cbranch_scc1 M_final\ns_mov_b32 s{sLAYER}, 1")
    for n in range(12): a(f"s_add_u32 s{sK+n}, s{sK+n}, {LD}")
    if stamps:
        a("s_waitcnt lgkmcnt(0)")
        for n in range(1, 7): a(f"s_mov_b32 s{sST+2*n+1+14-14}, s{sST+2*n}" if False else f"s_mov_b32 s{sST+14+n}, s{sST+2*n}")
    a("s_branch M_layer")
    a("M_final:")
    for c in range(5): a(f"buffer_store_dwordx2 v[{PK+2*c}:{PK+2*c+1}], v{vOut}, s[{sOUT}:{sOUT+3}], 0 offen offset:{32*c}")
    if stamps:
        a(f"s_waitcnt vmcnt(0)\ns_memrealtime s[{sST+2}:{sST+3}]\ns_waitcnt lgkmcnt(0)")
        src = [sST] + [sST+14+n for n in range(1,7)] + [sST+2*n for n in range(2,7)] + [sST+2, sMODE, sBUD, sBUD]
        for n, r in enumerate(src): a(f"v_mov_b32 v{40+n}, s{r}")
        a(f"s_lshl_b32 s{sT}, s2, 2\ns_add_u32 s{sT}, s{sT}, s{sW}\ns_lshl_b32 s{sT}, s{sT}, 6\ns_add_u32 s{sT}, s{sT}, 0x3000000\ns_mov_b64 exec, 1")
        for n in range(4): a(f"buffer_store_dwordx4 v[{40+4*n}:{43+4*n}], off, s[{sWS}:{sWS+3}], s{sT} offset:{16*n}")
    a("s_endpgm")
    for o in ool: a(o)
    a("M_loader:")
    a(f"s_sub_u32 s{sW}, s{sW}, 4\ns_lshl_b32 s40, s{sW}, 10\nv_add_u32 v1, s40, v{vL[0]}")
    a(f"s_mul_i32 s{sSEG}, s{sJ}, 102400\ns_add_u32 s{sSEG+1}, s{sSEG}, {WP2}\ns_add_u32 s{sSEG}, s{sSEG}, {WP1}\ns_mul_i32 s{sSEG+2}, s3, 122880\ns_add_u32 s{sSEG+2}, s{sSEG+2}, {WP3}\ns_mul_i32 s{sSEG+3}, s{sJ}, 245760\ns_add_u32 s{sSEG+3}, s{sSEG+3}, {WP4}")
    a("s_waitcnt lgkmcnt(0)")
    srd(a, sWS, sT, WS_BYTES)
    def issue(p0, p1):
        while p0 < p1:
            k = [i for i,(x,y) in enumerate(SEG) if x <= p0 % 560 < y][0]
            x, y = SEG[k]; base = p0 - p0 % 560
            pe = min(p1, base + y)
            l = a.label("M_ld")
            a(f"s_add_u32 s43, s{sSEG+k}, {(p0-base-x)*1024}\ns_mov_b32 s41, {(pe-p0)//4}\n{l}:")
            a(f"s_mov_b32 m0, s40\ns_add_u32 s40, s40, 4096\ns_cmp_ge_u32 s40, {RING*1024}\ns_cselect_b32 s42, {RING*1024}, 0\ns_sub_u32 s40, s40, s42")
            a(f"buffer_load_dwordx4 v1, s[{sWS}:{sWS+3}], s43 offen lds\ns_add_u32 s43, s43, 4096\ns_sub_u32 s41, s41, 1\ns_cmp_lg_u32 s41, 0\ns_cbranch_scc1 {l}")
            p0 = pe
    a("s_barrier")
    issue(0, RING)
    a("M_lloop:")
    issued = RING
    for n, (need, upto) in enumerate(events):
        if need is not None: a(f"s_waitcnt vmcnt({(issued-need)//4})")
        a("s_barrier")
        if upto is not None:
            if upto > 560:
                assert n == len(events)-1 and issued == 560 and upto == 560+RING
                a(f"s_cmp_eq_u32 s{sLAYER}, 1\ns_cbranch_scc1 M_end\ns_mov_b32 s{sLAYER}, 1")
            issue(issued, upto); issued = upto
    a("s_branch M_lloop")
    a("M_end:\ns_endpgm")
```

```python
from asmlib import *
from layout import *

KA = dict(q=0,k=8,v=16,sk=24,h=32,D=40,bx=48,w1=56,w2=64,w3=72,w4=80,out=88,dbg=96,ws=104)
NKV, NRP, NINIT = 320, 340, 37
P_GRID = NKV + NRP + NINIT

def wave_lane(a, vw=1, vl=2, sw=28):
    a(f"v_lshrrev_b32 v{vw}, 6, v0\nv_and_b32 v{vl}, 63, v0\ns_nop 0\nv_readfirstlane_b32 s{sw}, v{vw}")

def gen_P(a, kv_mimic=False):
    a(kernel_header("prep_kernel"))
    a(f"s_cmp_ge_u32 s2, {P_GRID}\ns_cbranch_scc1 P_end")
    a(f"s_load_dwordx2 s[4:5], s[0:1], {KA['ws']}")
    wave_lane(a)
    a(f"s_cmp_ge_u32 s2, {NKV}\ns_cbranch_scc1 P_notkv")
    a(f"s_load_dwordx4 s[8:11], s[0:1], {KA['k']}\ns_load_dwordx2 s[6:7], s[0:1], {KA['sk']}")
    a("s_mul_hi_u32 s29, s2, 429496730   ; tb = b/10\ns_mul_i32 s30, s29, 10\ns_sub_u32 s30, s2, s30 ; cb")
    a("s_lshl_b32 s30, s30, 6\ns_lshl_b32 s31, s28, 4\ns_add_u32 s30, s30, s31")
    a("v_lshrrev_b32 v3, 3, v2   ; octet\nv_and_b32 v4, 7, v2   ; pair")
    a("v_lshlrev_b32 v5, 1, v4\nv_add_u32 v5, s30, v5    ; ch")
    a("s_lshl_b32 s31, s29, 6   ; t0\nv_lshlrev_b32 v6, 3, v3\nv_add_u32 v6, s31, v6")
    a("v_mul_u32_u24 v7, 1280, v6\nv_lshl_add_u32 v7, v5, 1, v7")
    a("v_subrev_u32 v8, 3840, v7")
    a("v_lshlrev_b32 v9, 3, v5")
    a("v_lshlrev_b32 v10, 12, v5\nv_lshl_add_u32 v10, v6, 1, v10")
    a("s_mov_b32 s32, 5120")
    a("s_waitcnt lgkmcnt(0)")
    srd(a, 12, 8, S*D*2); srd(a, 16, 10, S*D*2); srd(a, 20, 6, D*8); srd(a, 24, 4, WS_BYTES)
    a("buffer_load_dwordx4 v[12:15], v9, s[20:23], 0 offen")
    K0, V0 = 16, 27
    for m in range(3): a(f"buffer_load_dword v{K0+m}, v8, s[12:15], 0 offen offset:{1280*m}")
    for r in range(8):
        so = "0" if r < 4 else "s32"
        a(f"buffer_load_dword v{K0+3+r}, v7, s[12:15], {so} offen offset:{1280*(r&3)}")
        a(f"buffer_load_dword v{V0+r}, v7, s[16:19], {so} offen offset:{1280*(r&3)}")
    KU, VU, WU, AC = 36, 58, 74, 82
    def unpack(dst, src):
        a(f"v_lshlrev_b32 v{dst}, 16, v{src}\nv_and_b32 v{dst+1}, 0xffff0000, v{src}")
    a("s_waitcnt vmcnt(16)")
    for tau in range(4):
        for c in range(2):
            src = 12 + 2*c + (tau>>1)
            a(f"v_lshlrev_b32 v{WU+2*tau+c}, 16, v{src}" if tau%2==0 else f"v_and_b32 v{WU+2*tau+c}, 0xffff0000, v{src}")
    for m in range(3): unpack(KU+2*m, K0+m)
    def rnd(p):
        a(f"v_cvt_pk_bf16_f32 v100, v{p}, v{p+1}")
        unpack(p, 100)
    for r in range(8):
        a(f"s_waitcnt vmcnt({14-2*r})")
        unpack(KU+2*(3+r), K0+3+r); unpack(VU+2*r, V0+r)
        acc = AC+2*r
        kk = lambda tau: KU + 2*(r+3-tau)
        if not kv_mimic:
            a(f"v_pk_mul_f32 v[{acc}:{acc+1}], v[{kk(3)}:{kk(3)+1}], v[{WU+6}:{WU+7}]")
            for tau in (2,1,0):
                a(f"v_pk_fma_f32 v[{acc}:{acc+1}], v[{kk(tau)}:{kk(tau)+1}], v[{WU+2*tau}:{WU+2*tau+1}], v[{acc}:{acc+1}]")
        else:
            a(f"v_pk_mul_f32 v[{acc}:{acc+1}], v[{kk(3)}:{kk(3)+1}], v[{WU+6}:{WU+7}]"); rnd(acc)
            for tau in (2,1,0):
                a(f"v_pk_mul_f32 v[98:99], v[{kk(tau)}:{kk(tau)+1}], v[{WU+2*tau}:{WU+2*tau+1}]"); rnd(98)
                a(f"v_pk_add_f32 v[{acc}:{acc+1}], v[{acc}:{acc+1}], v[98:99]"); rnd(acc)
        a(f"v_pk_mul_f32 v[{acc}:{acc+1}], v[{acc}:{acc+1}], v[{VU+2*r}:{VU+2*r+1}]")
    for c in range(2):
        for q in range(4):
            a(f"v_cvt_pk_bf16_f32 v{12+4*c+q}, v{AC+2*(7-2*q)+c}, v{AC+2*(6-2*q)+c}")
    a(f"s_mov_b32 s33, {KVT}\ns_mov_b32 s34, {KVT+4096}")
    a("buffer_store_dwordx4 v[12:15], v10, s[24:27], s33 offen\nbuffer_store_dwordx4 v[16:19], v10, s[24:27], s34 offen")
    a("s_endpgm")
    a("P_notkv:")
    a(f"s_cmp_ge_u32 s2, {NKV+NRP}\ns_cbranch_scc1 P_init")
    a(f"s_load_dwordx8 s[8:15], s[0:1], {KA['w1']}")
    a(f"s_sub_u32 s29, s2, {NKV}\ns_lshl_b32 s29, s29, 2\ns_add_u32 s29, s29, s28   ; unit")
    a("v_lshrrev_b32 v3, 5, v2   ; half\nv_bfe_u32 v4, v2, 3, 2   ; r\nv_and_b32 v5, 7, v2\nv_lshlrev_b32 v5, 4, v5")
    a("s_lshl_b32 s40, s28, 12")
    a("s_waitcnt lgkmcnt(0)")
    srd(a, 24, 4, WS_BYTES)
    a("s_mov_b32 s19, 0x00020000")
    a("s_cmp_ge_u32 s29, 400\ns_cbranch_scc1 P_r34")
    a("s_cmp_ge_u32 s29, 200")
    a(f"s_cselect_b32 s16, s10, s8\ns_cselect_b32 s17, s11, s9\ns_cselect_b32 s37, {WP2-WP1}, 0\ns_cselect_b32 s30, 200, 0\ns_add_u32 s37, s37, {WP1}\ns_sub_u32 s29, s29, s30")
    a(f"s_mov_b32 s18, {D*D*2}\ns_mov_b32 s35, 1280\ns_mov_b32 s38, 102400")
    a("s_mul_hi_u32 s31, s29, 429496730\ns_mul_i32 s30, s31, 10\ns_sub_u32 s30, s29, s30")
    a("s_mov_b32 s39, 0\ns_branch P_map640")
    a("P_r34:")
    a("s_cmp_ge_u32 s29, 880\ns_cbranch_scc1 P_r3")
    a(f"s_sub_u32 s29, s29, 400\ns_mov_b32 s16, s14\ns_mov_b32 s17, s15\ns_mov_b32 s18, {F*D*2}\ns_mov_b32 s35, 1280\ns_mov_b32 s37, {WP4}\ns_mov_b32 s38, 245760")
    a("s_mul_hi_u32 s31, s29, 429496730\ns_mul_i32 s30, s31, 10\ns_sub_u32 s30, s29, s30")
    a("s_mov_b32 s39, 0\ns_mov_b32 s41, 8\ns_lshl_b32 s44, s31, 5\ns_add_u32 s45, s44, 4\ns_add_u32 s46, s44, 16\ns_add_u32 s47, s44, 20\ns_branch P_mapped")
    a("P_r3:")
    a(f"s_sub_u32 s29, s29, 880\ns_mov_b32 s16, s12\ns_mov_b32 s17, s13\ns_mov_b32 s18, {F*D*2}\ns_mov_b32 s35, 3072\ns_mov_b32 s37, {WP3}\ns_mov_b32 s38, 122880")
    a("s_mul_hi_u32 s31, s29, 178956971\ns_mul_i32 s30, s31, 24\ns_sub_u32 s30, s29, s30\ns_mov_b32 s39, 1")
    a("P_map640:")
    a("s_cmp_ge_u32 s31, 16\ns_cbranch_scc1 P_split")
    a("s_lshr_b32 s44, s31, 1\ns_mul_i32 s44, s44, 80\ns_and_b32 s45, s31, 1\ns_lshl_b32 s45, s45, 5\ns_add_u32 s44, s44, s45")
    a("s_add_u32 s45, s44, 4\ns_add_u32 s46, s44, 8\ns_add_u32 s47, s44, 12\ns_mov_b32 s41, 16\ns_branch P_mapped")
    a("P_split:")
    a("s_sub_u32 s44, s31, 16\ns_mul_i32 s44, s44, 160\ns_add_u32 s44, s44, 64\ns_add_u32 s45, s44, 8\ns_add_u32 s46, s44, 80\ns_add_u32 s47, s44, 88\ns_mov_b32 s41, 4")
    a("P_mapped:")
    a("s_and_b32 s17, s17, 0xffff")
    a("v_mul_lo_u32 v6, v3, s41\nv_add_u32 v6, v6, v4\nv_mul_lo_u32 v6, v6, s35\nv_add_u32 v6, v6, v5")
    a("s_lshl_b32 s42, s30, 7")
    for g in range(4):
        a(f"s_mul_i32 s43, s{44+g}, s35\ns_add_u32 s43, s43, s42\ns_add_u32 m0, s40, {1024*g}\ns_nop 0")
        a("buffer_load_dwordx4 v6, s[16:19], s43 offen lds")
    a("v_lshrrev_b32 v7, 4, v2   ; gamma\nv_bfe_u32 v8, v2, 2, 2   ; r\nv_and_b32 v9, 3, v2   ; cc")
    a("v_lshlrev_b32 v8, 7, v8\nv_lshl_add_u32 v8, v9, 3, v8\nv_add_u32 v8, s40, v8")
    a("v_lshlrev_b32 v10, 4, v2   ; lane*16")
    a("s_cmp_eq_u32 s39, 1\ns_cbranch_scc1 P_rd3")
    a("v_lshl_add_u32 v8, v7, 10, v8")
    a("s_waitcnt vmcnt(0)")
    for q in range(4):
        a(f"ds_read_b64_tr_b16 v[{12+4*q}:{13+4*q}], v8 offset:{32*q}\nds_read_b64_tr_b16 v[{14+4*q}:{15+4*q}], v8 offset:{32*q+512}")
    for q in range(4):
        a(f"s_lshl_b32 s43, s30, 2\ns_add_u32 s43, s43, {q}   ; T16\ns_mul_i32 s48, s43, 52429\ns_lshr_b32 s48, s48, 18   ; j\ns_mul_i32 s49, s48, 5\ns_sub_u32 s49, s43, s49   ; c")
        a("s_mul_i32 s48, s48, s38\ns_mul_i32 s50, s31, 5\ns_add_u32 s49, s49, s50\ns_lshl_b32 s49, s49, 10\ns_add_u32 s48, s48, s49\ns_add_u32 s48, s48, s37")
        a(f"s_waitcnt lgkmcnt({6-2*q})\nbuffer_store_dwordx4 v[{12+4*q}:{15+4*q}], v10, s[24:27], s48 offen")
    a("s_endpgm")
    a("P_rd3:")
    a("v_lshrrev_b32 v9, 1, v7\nv_lshl_add_u32 v8, v9, 10, v8\nv_and_b32 v9, 1, v7\nv_lshl_add_u32 v8, v9, 5, v8")
    a("s_waitcnt vmcnt(0)")
    for q in range(4):
        hh, qq = q>>1, q&1
        off = hh*2048 + 64*qq
        a(f"ds_read_b64_tr_b16 v[{12+4*q}:{13+4*q}], v8 offset:{off}\nds_read_b64_tr_b16 v[{14+4*q}:{15+4*q}], v8 offset:{off+512}")
    for q in range(4):
        hh, qq = q>>1, q&1
        a(f"s_lshl_b32 s43, s30, 1\ns_add_u32 s43, s43, {qq}   ; T32\ns_mul_i32 s48, s43, 43691\ns_lshr_b32 s48, s48, 17   ; J\ns_mul_i32 s49, s48, 3\ns_sub_u32 s49, s43, s49   ; tile")
        a(f"s_mul_i32 s48, s48, s38\ns_mul_i32 s50, s31, 6\ns_add_u32 s49, s49, s50\ns_add_u32 s49, s49, {3*hh}\ns_lshl_b32 s49, s49, 10\ns_add_u32 s48, s48, s49\ns_add_u32 s48, s48, s37")
        a(f"s_waitcnt lgkmcnt({6-2*q})\nbuffer_store_dwordx4 v[{12+4*q}:{15+4*q}], v10, s[24:27], s48 offen")
    a("s_endpgm")
    a("P_init:")
    a(f"s_sub_u32 s29, s2, {NKV+NRP}")
    a("s_waitcnt lgkmcnt(0)")
    srd(a, 24, 4, WS_BYTES)
    a("v_lshlrev_b32 v3, 4, v0")
    a("s_cmp_eq_u32 s29, 36\ns_cbranch_scc1 P_flags")
    a(f"s_cmp_ge_u32 s29, 18\ns_cselect_b32 s30, {LD-18*16384}, 0\ns_add_u32 s30, s30, {STX}\ns_lshl_b32 s31, s29, 14\ns_add_u32 s30, s30, s31")
    for i in range(4): a(f"v_mov_b32 v{4+i}, -1")
    for i in range(4): a(f"buffer_store_dwordx4 v[4:7], v3, s[24:27], s30 offen\ns_add_u32 s30, s30, 4096")
    a("s_endpgm")
    a("P_flags:")
    for i in range(4): a(f"v_mov_b32 v{4+i}, 0")
    a(f"s_mov_b32 s30, {FLAGS}\ns_mov_b32 s31, {XID}")
    a("buffer_store_dwordx4 v[4:7], v3, s[24:27], s30 offen\nbuffer_store_dwordx4 v[4:7], v3, s[24:27], s31 offen")
    a("P_end:\ns_endpgm")

NCONV, NCS = 160, 22
C_GRID = NCONV + NCS
C_XZ = 576
C_H0 = C_XZ + 4096
C_H1 = C_H0 + 4160
C_WAVE = C_H1 + 4160
C_LDS = 81920 + 1024

def gen_C(a):
    a(kernel_header("conv_kernel"))
    a(f"s_cmp_ge_u32 s2, {C_GRID}\ns_cbranch_scc1 C_end")
    a(f"s_load_dwordx2 s[4:5], s[0:1], {KA['ws']}\ns_load_dwordx4 s[8:11], s[0:1], {KA['h']}")
    wave_lane(a)
    a("v_lshlrev_b32 v3, 4, v2   ; lane*16")
    a(f"s_cmp_ge_u32 s2, {NCONV}\ns_cbranch_scc1 C_colsum")
    a("s_lshl_b32 s29, s2, 2\ns_add_u32 s29, s29, s28   ; channel")
    a(f"s_mul_i32 s40, s28, {C_WAVE}")
    a("s_lshl_b32 s30, s29, 12")
    a("v_and_b32 v4, 15, v2   ; i / n\nv_lshrrev_b32 v5, 4, v2   ; g\nv_lshrrev_b32 v6, 1, v5   ; g>>1\nv_and_b32 v7, 1, v5   ; g&1")
    a("s_waitcnt lgkmcnt(0)")
    srd(a, 12, 8, D*S*2); srd(a, 16, 10, D*2); srd(a, 24, 4, WS_BYTES)
    for m in range(4):
        a(f"buffer_load_dwordx4 v[{20+8*m}:{23+8*m}], v3, s[12:15], s30 offen offset:{1024*m}")
        a(f"buffer_load_dword v{24+8*m}, v3, s[12:15], s30 offen offset:{1024*m+16}")
    a(f"s_add_u32 s31, s30, {KVT}")
    for m in range(4):
        a(f"s_add_u32 m0, s40, {C_XZ+1024*m}\ns_nop 0\nbuffer_load_dwordx4 v3, s[24:27], s31 offen lds\ns_add_u32 s31, s31, 1024")
    a("s_lshl_b32 s32, s29, 1\nv_mov_b32 v8, s32\nbuffer_load_ushort v9, v8, s[16:19], 0 offen")
    a("v_mov_b32 v12, 0\nv_mov_b32 v13, 0\nv_mov_b32 v14, 0\nv_mov_b32 v15, 0")
    a("v_add_u32 v10, s40, v3")
    a(f"s_mov_b32 exec_hi, 15\nds_write_b128 v10, v[12:15]\ns_mov_b64 exec, 3\nds_write_b128 v10, v[12:15] offset:{C_H0}\ns_mov_b64 exec, -1")
    a("v_lshlrev_b32 v11, 4, v6\nv_add_u32 v11, v11, v4\nv_lshlrev_b32 v16, 3, v7\nv_sub_u32 v11, v11, v16\nv_add_u32 v11, 9, v11")
    a(f"v_and_b32 v16, 1, v11\nv_lshrrev_b32 v11, 1, v11\nv_lshlrev_b32 v11, 2, v11\nv_mul_u32_u24 v16, {C_H1-C_H0}, v16\nv_add_u32 v11, v11, v16\ns_add_u32 s33, s40, {C_H0}")
    AB = 60
    a(f"v_add_u32 v{AB}, s33, v11")
    for i in range(1,4): a(f"v_add_u32 v{AB+i}, {1024*i}, v{AB}")
    a(f"v_sub_u32 v16, v4, v6\nv_lshlrev_b32 v16, 5, v16\nv_lshl_add_u32 v16, v7, 4, v16\ns_add_u32 s33, s40, {C_XZ}\nv_add_u32 v64, s33, v16")
    a("v_lshlrev_b32 v65, 5, v4\nv_lshl_add_u32 v65, v5, 3, v65")
    for m in range(4):
        b = 20+8*m
        a(f"s_waitcnt vmcnt({11-2*m})")
        a(f"ds_write_b128 v10, v[{b}:{b+3}] offset:{C_H0+32+1024*m}")
        if m == 0:
            a(f"v_readfirstlane_b32 s34, v{b}")
        for q in range(4): a(f"v_alignbit_b32 v{52+q}, v{b+q+1}, v{b+q}, 16")
        a(f"ds_write_b128 v10, v[52:55] offset:{C_H1+32+1024*m}")
        if m == 0:
            a("s_lshl_b32 s34, s34, 16\nv_mov_b32 v19, s34\nv_cmp_eq_u32 vcc, 1, v2\nv_mov_b32 v16, 0\nv_mov_b32 v17, 0\nv_mov_b32 v18, 0\nv_cndmask_b32 v19, 0, v19, vcc")
            a(f"s_mov_b64 exec, 3\nds_write_b128 v10, v[16:19] offset:{C_H1}\ns_mov_b64 exec, -1")
    a("s_waitcnt vmcnt(0)")
    a("v_and_b32 v16, 7, v4\nv_sub_u32 v16, 7, v16   ; jj\nv_and_b32 v17, 1, v16\nv_lshlrev_b32 v17, 4, v17\nv_lshlrev_b32 v9, v17, v9\nv_lshrrev_b32 v16, 1, v16")
    a("v_lshrrev_b32 v17, 3, v4\nv_cmp_eq_u32 vcc, v17, v5\ns_nop 1\nv_cndmask_b32 v9, 0, v9, vcc")
    for q in range(4): a(f"v_cmp_eq_u32 vcc, {q}, v16\ns_nop 1\nv_cndmask_b32 v{56+q}, 0, v9, vcc")
    ACC = 68
    BUF = [100, 164]
    def loads(buf):
        L = []
        for m in range(8): L.append(f"ds_read_b128 v[{buf+32+4*m}:{buf+35+4*m}], v64 offset:{512*m}")
        for lam in range(8):
            o = 128*(lam&1)
            L.append(f"ds_read2_b32 v[{buf+4*lam}:{buf+4*lam+1}], v{AB+(lam>>1)} offset0:{o} offset1:{o+1}")
            L.append(f"ds_read2_b32 v[{buf+4*lam+2}:{buf+4*lam+3}], v{AB+(lam>>1)} offset0:{o+2} offset1:{o+3}")
        return L
    adv = [f"v_add_u32 v{AB+i}, 64, v{AB+i}" for i in range(4)] + ["v_subrev_u32 v64, 64, v64"]
    a("s_waitcnt lgkmcnt(0)")
    for l in loads(BUF[0]): a(l)
    for l in adv: a(l)
    a("s_waitcnt lgkmcnt(15)")
    a("s_waitcnt lgkmcnt(0)")
    for c in range(8):
        a(f"v_mfma_f32_16x16x32_bf16 v[{ACC+4*c}:{ACC+4*c+3}], v[56:59], v[{BUF[0]+32+4*c}:{BUF[0]+35+4*c}], 0")
    a("s_mov_b32 s35, 0\nC_loop:")
    for half in range(2):
        cur, nxt = BUF[half], BUF[1-half]
        L = loads(nxt) + adv
        n = 0
        for lam in range(8):
            for c in range(lam, 8):
                a(f"v_mfma_f32_16x16x32_bf16 v[{ACC+4*c}:{ACC+4*c+3}], v[{cur+4*lam}:{cur+4*lam+3}], v[{cur+32+4*(c-lam)}:{cur+35+4*(c-lam)}], v[{ACC+4*c}:{ACC+4*c+3}]")
                if n < len(L): a(L[n])
                n += 1
        a("s_waitcnt lgkmcnt(0)")
    a("s_add_u32 s35, s35, 1\ns_cmp_lt_u32 s35, 4\ns_cbranch_scc1 C_loop")
    a(f"s_add_u32 s31, s30, {Y}\ns_nop 7")
    for c in range(8):
        a(f"v_cvt_pk_bf16_f32 v{20+2*c}, v{ACC+4*c}, v{ACC+4*c+1}\nv_cvt_pk_bf16_f32 v{21+2*c}, v{ACC+4*c+2}, v{ACC+4*c+3}")
        a(f"buffer_store_dwordx2 v[{20+2*c}:{21+2*c}], v65, s[24:27], s31 offen offset:{512*c}")
    a("s_endpgm")
    a("C_colsum:")
    a(f"s_sub_u32 s29, s2, {NCONV}\ns_lshl_b32 s29, s29, 2\ns_add_u32 s29, s29, s28")
    a("s_waitcnt lgkmcnt(0)")
    srd(a, 24, 4, WS_BYTES)
    for i in range(4): a(f"v_mov_b32 v{4+i}, 0x3f803f80")
    a("s_cmp_ge_u32 s29, 40\ns_cbranch_scc1 C_cs3")
    a(f"s_mul_i32 s30, s29, 52429\ns_lshr_b32 s30, s30, 18\ns_mul_i32 s31, s30, 5\ns_sub_u32 s31, s29, s31\ns_mul_i32 s30, s30, 102400\ns_lshl_b32 s31, s31, 10\ns_add_u32 s30, s30, s31\ns_add_u32 s30, s30, {WP1}")
    for s in range(20): a(f"buffer_load_dwordx4 v[{32+4*s}:{35+4*s}], v3, s[24:27], s30 offen\ns_add_u32 s30, s30, 5120")
    for s in range(20):
        a(f"s_waitcnt vmcnt({19-s})\nv_mfma_f32_16x16x32_bf16 v[8:11], v[{32+4*s}:{35+4*s}], v[4:7], {'0' if s==0 else 'v[8:11]'}")
    a(f"s_lshl_b32 s30, s29, 6\ns_add_u32 s30, s30, {CS1}\nv_and_b32 v12, 48, v2\nv_and_b32 v13, 15, v2\nv_cmp_eq_u32 vcc, 0, v13\ns_nop 4\ns_mov_b64 exec, vcc")
    a("buffer_store_dwordx4 v[8:11], v12, s[24:27], s30 offen\ns_endpgm")
    a("C_cs3:")
    a(f"s_sub_u32 s29, s29, 40\ns_mul_i32 s30, s29, 43691\ns_lshr_b32 s30, s30, 17\ns_mul_i32 s31, s30, 3\ns_sub_u32 s31, s29, s31\ns_mul_i32 s30, s30, 122880\ns_lshl_b32 s31, s31, 10\ns_add_u32 s30, s30, s31\ns_add_u32 s30, s30, {WP3}")
    for s in range(40): a(f"buffer_load_dwordx4 v[{32+4*s}:{35+4*s}], v3, s[24:27], s30 offen\ns_add_u32 s30, s30, 3072")
    for s in range(40):
        a(f"s_waitcnt vmcnt({39-s})\nv_mfma_f32_32x32x16_bf16 v[8:23], v[{32+4*s}:{35+4*s}], v[4:7], {'0' if s==0 else 'v[8:23]'}")
    a(f"s_lshl_b32 s30, s29, 7\ns_add_u32 s30, s30, {CS3}\nv_lshrrev_b32 v24, 5, v2\nv_lshlrev_b32 v24, 4, v24\nv_and_b32 v25, 31, v2\nv_cmp_eq_u32 vcc, 0, v25\ns_nop 7\ns_mov_b64 exec, vcc")
    for q in range(4): a(f"buffer_store_dwordx4 v[{8+4*q}:{11+4*q}], v24, s[24:27], s30 offen offset:{32*q}")
    a("C_end:\ns_endpgm")
```

```python
KVT  = 0x0000000
Y    = 0x0280000
WP1  = 0x0500000
WP2  = 0x05C8000
WP3  = 0x0690000
WP4  = 0x0870000
CS1  = 0x0A50000
CS3  = 0x0A51000
FLAGS= 0x0A54000
XID  = 0x0A55000
L0   = 0x0A60000
LD   = 0x0E10000
XA   = L0 + 0x000000
HS   = L0 + 0x280000
X1   = L0 + 0x500000
H    = L0 + 0x780000
STA  = L0 + 0xD80000
ST1  = L0 + 0xDA0000
STX  = L0 + 0xDC0000
HALO = L0 + 0xDE0000
WS_BYTES = 0x10000000
S, D, F = 2048, 640, 1536

def kmap640(s, g, jj):
    if s < 16:
        return 80*(s>>1) + 32*(s&1) + 16*(jj>>2) + 4*g + (jj&3)
    m = s-16
    return 80*(2*m + (g>>1)) + 64 + 8*(g&1) + jj
def kmap1536(s, g, jj):
    return 32*s + 16*(g>>1) + 8*(jj>>2) + 4*(g&1) + (jj&3)
```

```python
import sys
from asmlib import *
from layout import *
import gen_pc
def build(with_m=True, **opt):
    a = Asm()
    a(f"; @launch kernel=prep_kernel grid=({gen_pc.P_GRID},1,1) block=(256,1,1) lds=16384")
    a(f"; @launch kernel=conv_kernel grid=({gen_pc.C_GRID},1,1) block=(256,1,1) lds={gen_pc.C_LDS}")
    if with_m:
        import gen_m
        a(f"; @launch kernel=main_kernel grid=(256,1,1) block=(512,1,1) lds={gen_m.M_LDS}")
    a('.amdgcn_target "amdgcn-amd-amdhsa--gfx950"\n.text')
    gen_pc.gen_P(a, kv_mimic=opt.get("kv_mimic", False))
    gen_pc.gen_C(a)
    if with_m: gen_m.gen_M(a, **opt)
    a('.section .rodata,"a"')
    a(kernel_desc("prep_kernel", 104, 64, 104))
    a(kernel_desc("conv_kernel", 232, 64, 232))
    if with_m: a(kernel_desc("main_kernel", 256, 102, 256))
    return a.text()
if __name__ == "__main__":
    out = sys.argv[1] if len(sys.argv) > 1 else "cur.s"
    open(out, "w").write(build(with_m=("nom" not in sys.argv)))
```

```python
from asmlib import *
from layout import *

KA = dict(q=0,k=8,v=16,sk=24,h=32,D=40,bx=48,w1=56,w2=64,w3=72,w4=80,out=88,dbg=96,ws=104)
P_GRID, P_BLOCK, P_LDS = 256, 320, 5*2048

def wave_lane(a, vw=1, vl=2, sw=28):
    a(f"v_lshrrev_b32 v{vw}, 6, v0\nv_and_b32 v{vl}, 63, v0\ns_nop 0\nv_readfirstlane_b32 s{sw}, v{vw}")
def pc_stamp0(a, stamps):
    if stamps: a('s_memrealtime s[60:61]')
def pc_end(a, stamps, base, srd=24):
    if stamps:
        a(f's_waitcnt vmcnt(0)\ns_memrealtime s[62:63]\ns_waitcnt lgkmcnt(0)\ns_lshl_b32 s59, s2, 3\ns_add_u32 s59, s59, s28\ns_lshl_b32 s59, s59, 5\ns_add_u32 s59, s59, {base}\ns_mov_b64 exec, 1\nv_mov_b32 v4, s60\nv_mov_b32 v5, s62\nv_mov_b32 v6, s56\nv_mov_b32 v7, s58\nbuffer_store_dwordx4 v[4:7], off, s[{srd}:{srd+3}], s59\nv_mov_b32 v8, s64\nv_mov_b32 v9, s66\nv_mov_b32 v10, s68\nv_mov_b32 v11, s70\nbuffer_store_dwordx4 v[8:11], off, s[{srd}:{srd+3}], s59 offset:16')
    a('s_endpgm')

def gen_P(a, kv_mimic=False, stamps=False, pst='sc1', ntk='nt', hpre='nt', cpre='sc1', **opt):
    a(kernel_header("prep_kernel"))
    a(f"s_cmp_ge_u32 s2, {P_GRID}\ns_cbranch_scc1 P_end")
    pc_stamp0(a, stamps)
    a(f"s_load_dwordx2 s[4:5], s[0:1], {KA['ws']}\ns_load_dwordx4 s[8:11], s[0:1], {KA['k']}\ns_load_dwordx4 s[36:39], s[0:1], {KA['sk']}")
    wave_lane(a)
    a("s_lshr_b32 s29, s2, 1\ns_and_b32 s30, s2, 1\ns_mul_i32 s30, s30, 5\ns_add_u32 s30, s30, s28\ns_lshl_b32 s30, s30, 6")
    a("v_lshrrev_b32 v3, 5, v2   ; octet\nv_and_b32 v4, 31, v2   ; pair")
    a("v_lshlrev_b32 v5, 1, v4\nv_add_u32 v5, s30, v5    ; ch")
    a("s_lshl_b32 s31, s29, 4   ; t0\nv_lshlrev_b32 v6, 3, v3\nv_add_u32 v6, s31, v6")
    a("v_mul_u32_u24 v7, 1280, v6\nv_lshl_add_u32 v7, v5, 1, v7")
    a("v_subrev_u32 v8, 3840, v7")
    a("v_lshlrev_b32 v9, 3, v5")
    a("s_mov_b32 s32, 5120")
    a("s_waitcnt lgkmcnt(0)")
    srd(a, 12, 8, S*D*2); srd(a, 16, 10, S*D*2); srd(a, 20, 36, D*8)
    a("buffer_load_dwordx4 v[12:15], v9, s[20:23], 0 offen")
    K0, V0 = 16, 27
    for m in range(3): a(f"buffer_load_dword v{K0+m}, v8, s[12:15], 0 offen offset:{1280*m} {ntk}")
    for r in range(8):
        so = "0" if r < 4 else "s32"
        a(f"buffer_load_dword v{K0+3+r}, v7, s[12:15], {so} offen offset:{1280*(r&3)} {ntk}")
        a(f"buffer_load_dword v{V0+r}, v7, s[16:19], {so} offen offset:{1280*(r&3)} {ntk}")
    extra = 0
    srd(a, 24, 4, WS_BYTES)
    a("s_lshl_b32 s33, s28, 11\nv_lshlrev_b32 v10, 6, v4\nv_lshl_add_u32 v10, v3, 4, v10\nv_add_u32 v10, s33, v10\nv_lshlrev_b32 v9, 4, v2\nv_add_u32 v11, s33, v9")
    a(f"s_mul_i32 s33, s29, {D*32}\ns_lshl_b32 s34, s30, 5\ns_add_u32 s33, s33, s34\ns_add_u32 s33, s33, {KVT}")
    KU, VU, WU, AC = 36, 58, 74, 82
    def unpack(dst, src):
        a(f"v_lshlrev_b32 v{dst}, 16, v{src}\nv_and_b32 v{dst+1}, 0xffff0000, v{src}")
    a(f"s_waitcnt vmcnt({16+extra})")
    if stamps: a("s_memrealtime s[56:57]")
    for tau in range(4):
        for c in range(2):
            src = 12 + 2*c + (tau>>1)
            a(f"v_lshlrev_b32 v{WU+2*tau+c}, 16, v{src}" if tau%2==0 else f"v_and_b32 v{WU+2*tau+c}, 0xffff0000, v{src}")
    for m in range(3): unpack(KU+2*m, K0+m)
    def rnd(p):
        a(f"v_cvt_pk_bf16_f32 v100, v{p}, v{p+1}")
        unpack(p, 100)
    for r in range(8):
        a(f"s_waitcnt vmcnt({14-2*r+extra})")
        unpack(KU+2*(3+r), K0+3+r); unpack(VU+2*r, V0+r)
        acc = AC+2*r
        kk = lambda tau: KU + 2*(r+3-tau)
        if not kv_mimic:
            a(f"v_pk_mul_f32 v[{acc}:{acc+1}], v[{kk(3)}:{kk(3)+1}], v[{WU+6}:{WU+7}]")
            for tau in (2,1,0):
                a(f"v_pk_fma_f32 v[{acc}:{acc+1}], v[{kk(tau)}:{kk(tau)+1}], v[{WU+2*tau}:{WU+2*tau+1}], v[{acc}:{acc+1}]")
        else:
            a(f"v_pk_mul_f32 v[{acc}:{acc+1}], v[{kk(3)}:{kk(3)+1}], v[{WU+6}:{WU+7}]"); rnd(acc)
            for tau in (2,1,0):
                a(f"v_pk_mul_f32 v[98:99], v[{kk(tau)}:{kk(tau)+1}], v[{WU+2*tau}:{WU+2*tau+1}]"); rnd(98)
                a(f"v_pk_add_f32 v[{acc}:{acc+1}], v[{acc}:{acc+1}], v[98:99]"); rnd(acc)
        a(f"v_pk_mul_f32 v[{acc}:{acc+1}], v[{acc}:{acc+1}], v[{VU+2*r}:{VU+2*r+1}]")
    for c in range(2):
        for q in range(4):
            a(f"v_cvt_pk_bf16_f32 v{12+4*c+q}, v{AC+2*(7-2*q)+c}, v{AC+2*(6-2*q)+c}")
        a(f"ds_write_b128 v10, v[{12+4*c}:{15+4*c}] offset:{32*c}")
    a("ds_read_b128 v[20:23], v11\nds_read_b128 v[24:27], v11 offset:1024")
    if stamps: a("s_memrealtime s[58:59]\ns_waitcnt lgkmcnt(0)")
    a(f"s_waitcnt lgkmcnt(1)\nbuffer_store_dwordx4 v[20:23], v9, s[24:27], s33 offen {pst}\ns_waitcnt lgkmcnt(0)\nbuffer_store_dwordx4 v[24:27], v9, s[24:27], s33 offen offset:1024 {pst}")
    if hpre is not None:
        srd(a, 40, 38, D*S*2)
        a("s_and_b32 s46, s2, 7\ns_lshr_b32 s47, s2, 3\ns_mul_i32 s47, s47, 80\ns_lshl_b32 s48, s28, 4\ns_add_u32 s47, s47, s48\nv_and_b32 v10, 15, v2\nv_add_u32 v10, s47, v10")
        a("v_lshrrev_b32 v11, 7, v10\nv_lshlrev_b32 v11, 3, v11\nv_add_u32 v11, s46, v11\nv_lshlrev_b32 v11, 14, v11\nv_and_b32 v10, 127, v10\nv_lshl_add_u32 v10, v10, 7, v11")
        a(f"buffer_load_dword v35, v10, s[40:43], 0 offen {hpre}")
    if cpre is not None:
        a("s_getpc_b64 s[44:45]\nP_here:\ns_add_u32 s44, s44, conv_kernel-P_here\ns_addc_u32 s45, s45, 0")
        a("s_lshr_b32 s47, s2, 3\ns_mul_i32 s47, s47, 5\ns_add_u32 s47, s47, s28\ns_lshl_b32 s47, s47, 8\nv_and_b32 v10, 1, v2\nv_lshlrev_b32 v10, 7, v10\nv_add_u32 v10, s47, v10\nv_min_u32 v10, code_end-conv_kernel-4, v10")
        a(f"global_load_dword v101, v10, s[44:45] {cpre}")
    pc_end(a, stamps, 0x3100000)
    a("P_end:\ns_endpgm")

NCONV = 160
C_GRID, C_BLOCK = 256, 512
C_XZ = 17*128
C_X = C_XZ
C_H = C_X + 16384
C_HW = 8320
C_RP = 52*1024
C_LDS = C_RP + 4*8192

def gen_C(a, stamps=False, nt='nt', yst='', pst='sc1', ntq2='', **opt):
    a(kernel_header("conv_kernel"))
    a(f"s_cmp_ge_u32 s2, {C_GRID}\ns_cbranch_scc1 C_end")
    pc_stamp0(a, stamps)
    a(f"s_load_dwordx2 s[4:5], s[0:1], {KA['ws']}")
    wave_lane(a)
    a("v_lshlrev_b32 v3, 4, v2   ; lane*16")
    a(f"s_cmp_ge_u32 s2, {NCONV}\ns_cbranch_scc1 C_other\ns_cmp_ge_u32 s28, 4\ns_cbranch_scc1 C_help")
    a(f"s_load_dwordx4 s[8:11], s[0:1], {KA['h']}")
    a("s_lshl_b32 s29, s2, 2\ns_add_u32 s29, s29, s28   ; channel")
    a(f"s_mul_i32 s40, s28, {C_HW}\ns_add_u32 s40, s40, {C_H}")
    a("s_lshl_b32 s30, s29, 12")
    a("v_and_b32 v4, 15, v2   ; i / n\nv_lshrrev_b32 v5, 4, v2   ; g\nv_lshrrev_b32 v6, 1, v5   ; g>>1\nv_and_b32 v7, 1, v5   ; g&1")
    a(f"v_lshrrev_b32 v8, 3, v2\nv_and_b32 v9, 7, v2\nv_xor_b32 v9, v9, v8\nv_mul_u32_u24 v8, {D*32}, v8\nv_lshl_add_u32 v8, v9, 4, v8")
    a(f"s_mul_i32 s31, s28, {32*D*32}\ns_lshl_b32 s32, s2, 7\ns_add_u32 s31, s31, s32\ns_add_u32 s31, s31, {KVT}\ns_lshl_b32 s33, s28, 12")
    a("s_waitcnt lgkmcnt(0)")
    if stamps: a("s_memrealtime s[64:65]")
    srd(a, 12, 8, D*S*2); srd(a, 24, 4, WS_BYTES)
    for m in range(4):
        a(f"buffer_load_dwordx4 v[{20+8*m}:{23+8*m}], v3, s[12:15], s30 offen offset:{1024*m} {nt}")
        a(f"buffer_load_dword v{24+8*m}, v3, s[12:15], s30 offen offset:{1024*m+16} {nt}")
    for m in range(4):
        a(f"s_add_u32 m0, s33, {C_X+1024*m}\ns_nop 0\nbuffer_load_dwordx4 v8, s[24:27], s31 offen lds\ns_add_u32 s31, s31, {8*D*32}")
    srd(a, 16, 10, D*2)
    a("s_lshl_b32 s32, s29, 1\nv_mov_b32 v8, s32\nbuffer_load_ushort v9, v8, s[16:19], 0 offen")
    a("v_mov_b32 v12, 0\nv_mov_b32 v13, 0\nv_mov_b32 v14, 0\nv_mov_b32 v15, 0")
    a("v_add_u32 v10, s40, v3\ns_mul_i32 s32, s28, 544\nv_add_u32 v11, s32, v3")
    a(f"s_mov_b32 exec_hi, 3\nds_write_b128 v11, v[12:15]\ns_mov_b64 exec, 3\nds_write_b128 v10, v[12:15]\ns_mov_b64 exec, -1")
    a("v_lshlrev_b32 v11, 4, v6\nv_add_u32 v11, v11, v4\nv_lshlrev_b32 v16, 3, v7\nv_sub_u32 v11, v11, v16\nv_add_u32 v11, 9, v11")
    a(f"v_and_b32 v16, 1, v11\nv_lshrrev_b32 v11, 1, v11\nv_lshlrev_b32 v11, 2, v11\nv_mul_u32_u24 v16, 4160, v16\nv_add_u32 v11, v11, v16")
    AB = 60
    a(f"v_add_u32 v{AB}, s40, v11")
    for i in range(1,4): a(f"v_add_u32 v{AB+i}, {1024*i}, v{AB}")
    a(f"v_sub_u32 v66, v4, v6\nv_add_u32 v66, 24, v66\ns_lshl_b32 s32, s28, 1\nv_add_u32 v67, s32, v7")
    baddr = ["v_and_b32 v16, 7, v66", "v_xor_b32 v16, v16, v67", "v_lshlrev_b32 v16, 4, v16", "v_lshl_add_u32 v16, v66, 7, v16", f"v_subrev_u32 v64, {24*128-C_X}, v16", "v_subrev_u32 v66, 2, v66"]
    for l in baddr: a(l)
    a("v_lshlrev_b32 v65, 5, v4\nv_lshl_add_u32 v65, v5, 3, v65")
    for m in range(4):
        b = 20+8*m
        if stamps and m == 0: a("s_memrealtime s[66:67]")
        a(f"s_waitcnt vmcnt({11-2*m})")
        if stamps and m == 0: a("s_memrealtime s[68:69]")
        a(f"ds_write_b128 v10, v[{b}:{b+3}] offset:{32+1024*m}")
        if m == 0:
            a(f"v_readfirstlane_b32 s34, v{b}")
        for q in range(4): a(f"v_alignbit_b32 v{52+q}, v{b+q+1}, v{b+q}, 16")
        a(f"ds_write_b128 v10, v[52:55] offset:{4160+32+1024*m}")
        if m == 0:
            a("s_lshl_b32 s34, s34, 16\nv_mov_b32 v19, s34\nv_cmp_eq_u32 vcc, 1, v2\nv_mov_b32 v16, 0\nv_mov_b32 v17, 0\nv_mov_b32 v18, 0\nv_cndmask_b32 v19, 0, v19, vcc")
            a(f"s_mov_b64 exec, 3\nds_write_b128 v10, v[16:19] offset:4160\ns_mov_b64 exec, -1")
    a("s_waitcnt vmcnt(0) lgkmcnt(0)")
    if stamps: a("s_memrealtime s[70:71]")
    a("s_barrier")
    ACC = 68
    BUF = [100, 164]
    def loads(buf):
        L = []
        for m in range(8): L.append(f"ds_read_b128 v[{buf+32+4*m}:{buf+35+4*m}], v64 offset:{2048*m}")
        for lam in range(8):
            o = 128*(lam&1)
            L.append(f"ds_read2_b32 v[{buf+4*lam}:{buf+4*lam+1}], v{AB+(lam>>1)} offset0:{o} offset1:{o+1}")
            L.append(f"ds_read2_b32 v[{buf+4*lam+2}:{buf+4*lam+3}], v{AB+(lam>>1)} offset0:{o+2} offset1:{o+3}")
        return L
    adv = [f"v_add_u32 v{AB+i}, 64, v{AB+i}" for i in range(4)] + baddr
    for l in loads(BUF[0]): a(l)
    a("v_and_b32 v18, 7, v4\nv_sub_u32 v18, 7, v18   ; jj\nv_and_b32 v17, 1, v18\nv_lshlrev_b32 v17, 4, v17\nv_lshlrev_b32 v9, v17, v9\nv_lshrrev_b32 v18, 1, v18")
    a("v_lshrrev_b32 v17, 3, v4\nv_cmp_eq_u32 vcc, v17, v5\ns_nop 1\nv_cndmask_b32 v9, 0, v9, vcc")
    for q in range(4): a(f"v_cmp_eq_u32 vcc, {q}, v18\ns_nop 1\nv_cndmask_b32 v{56+q}, 0, v9, vcc")
    for l in adv: a(l)
    a("s_waitcnt lgkmcnt(0)")
    for c in range(8):
        a(f"v_mfma_f32_16x16x32_bf16 v[{ACC+4*c}:{ACC+4*c+3}], v[56:59], v[{BUF[0]+32+4*c}:{BUF[0]+35+4*c}], 0")
    if stamps: a("s_memrealtime s[56:57]\ns_waitcnt lgkmcnt(0)")
    a("s_mov_b32 s35, 0\nC_loop:")
    for half in range(2):
        cur, nxt = BUF[half], BUF[1-half]
        L = loads(nxt) + adv
        n = 0
        for lam in range(8):
            for c in range(lam, 8):
                a(f"v_mfma_f32_16x16x32_bf16 v[{ACC+4*c}:{ACC+4*c+3}], v[{cur+4*lam}:{cur+4*lam+3}], v[{cur+32+4*(c-lam)}:{cur+35+4*(c-lam)}], v[{ACC+4*c}:{ACC+4*c+3}]")
                if n < len(L): a(L[n])
                n += 1
        a("s_waitcnt lgkmcnt(0)")
    a("s_add_u32 s35, s35, 1\ns_cmp_lt_u32 s35, 4\ns_cbranch_scc1 C_loop")
    if stamps: a("s_memrealtime s[58:59]\ns_waitcnt lgkmcnt(0)")
    a(f"s_add_u32 s31, s30, {Y}\ns_nop 7")
    for c in range(8):
        a(f"v_cvt_pk_bf16_f32 v{20+2*c}, v{ACC+4*c}, v{ACC+4*c+1}\nv_cvt_pk_bf16_f32 v{21+2*c}, v{ACC+4*c+2}, v{ACC+4*c+3}")
        a(f"buffer_store_dwordx2 v[{20+2*c}:{21+2*c}], v65, s[24:27], s31 offen offset:{512*c} {yst}")
    pc_end(a, stamps, 0x3200000)
    a("C_help:")
    a(f"s_load_dwordx8 s[8:15], s[0:1], {KA['w1']}\ns_waitcnt lgkmcnt(0)\ns_barrier")
    a(f"s_sub_u32 s40, s28, 4\ns_lshl_b32 s29, s2, 1\ns_cmp_ge_u32 s28, 6\ns_cbranch_scc1 C_fill\ns_add_u32 s29, s29, s40\ns_add_u32 s29, s29, 384\ns_cmp_ge_u32 s29, 680\ns_cbranch_scc1 C_end\ns_branch C_rep")
    a("C_fill:   ; 960 KB of sentinels, 3 KB per wave")
    srd(a, 24, 4, WS_BYTES)
    for i in range(4): a(f"v_mov_b32 v{12+i}, -1")
    a(f"s_add_u32 s29, s29, s40\ns_sub_u32 s29, s29, 2\ns_mul_i32 s37, s29, 3072\ns_add_u32 s37, s37, {STA}")
    for i in range(3): a(f"buffer_store_dwordx4 v[12:15], v3, s[24:27], s37 offen offset:{1024*i} sc1")
    a("s_endpgm")
    a("C_other:")
    if opt.get('noother'): a("s_endpgm")
    a(f"s_cmp_lt_u32 s28, 4\ns_cbranch_scc1 C_qstat")
    a(f"s_load_dwordx8 s[8:15], s[0:1], {KA['w1']}\ns_sub_u32 s40, s28, 4\ns_sub_u32 s29, s2, {NCONV}\ns_lshl_b32 s29, s29, 2\ns_add_u32 s29, s29, s40\ns_waitcnt lgkmcnt(0)")
    a("C_rep:")
    a(f"s_lshl_b32 s40, s40, 13\ns_add_u32 s40, s40, {C_RP}")
    srd(a, 24, 4, WS_BYTES)
    a("s_mov_b32 s19, 0x00020000")
    a(f"s_cmp_ge_u32 s29, 240\ns_cbranch_scc1 C_n3\ns_mov_b32 s39, 1\ns_mul_hi_u32 s31, s29, 357913942\ns_mul_i32 s30, s31, 12\ns_sub_u32 s30, s29, s30\ns_mov_b32 s16, s12\ns_mov_b32 s17, s13\ns_mov_b32 s18, {F*D*2}\ns_mov_b32 s35, 3072\ns_mov_b32 s37, {WP3}\ns_mov_b32 s38, 122880\ns_branch C_sel")
    a(f"C_n3:\ns_mov_b32 s35, 1280\ns_cmp_ge_u32 s29, 480\ns_cbranch_scc1 C_n4\ns_sub_u32 s29, s29, 240\ns_mov_b32 s39, 3\ns_mov_b32 s16, s14\ns_mov_b32 s17, s15\ns_mov_b32 s18, {F*D*2}\ns_mov_b32 s37, {WP4}\ns_mov_b32 s38, 245760\ns_branch C_d5")
    a(f"C_n4:\ns_mov_b32 s18, {D*D*2}\ns_mov_b32 s38, 102400\ns_cmp_ge_u32 s29, 580\ns_cselect_b32 s16, s10, s8\ns_cselect_b32 s17, s11, s9\ns_cselect_b32 s39, 2, 0\ns_cselect_b32 s37, {WP2-WP1}, 0\ns_cselect_b32 s30, 100, 0\ns_add_u32 s37, s37, {WP1}\ns_sub_u32 s29, s29, 480\ns_sub_u32 s29, s29, s30")
    a("C_d5:\ns_mul_hi_u32 s31, s29, 858993460\ns_mul_i32 s30, s31, 5\ns_sub_u32 s30, s29, s30")
    a("C_sel:\ns_and_b32 s17, s17, 0xffff")
    a("s_cmp_eq_u32 s39, 3\ns_cbranch_scc1 C_m4\ns_cmp_ge_u32 s31, 16\ns_cbranch_scc1 C_split")
    a("s_lshr_b32 s44, s31, 1\ns_mul_i32 s44, s44, 80\ns_and_b32 s45, s31, 1\ns_lshl_b32 s45, s45, 5\ns_add_u32 s44, s44, s45")
    a("s_add_u32 s45, s44, 4\ns_add_u32 s46, s44, 8\ns_add_u32 s47, s44, 12\ns_mov_b32 s41, 16\ns_branch C_mapped")
    a("C_split:\ns_sub_u32 s44, s31, 16\ns_mul_i32 s44, s44, 160\ns_add_u32 s44, s44, 64\ns_add_u32 s45, s44, 8\ns_add_u32 s46, s44, 80\ns_add_u32 s47, s44, 88\ns_mov_b32 s41, 4\ns_branch C_mapped")
    a("C_m4:\ns_mov_b32 s41, 8\ns_and_b32 s44, s31, 15\ns_mul_i32 s44, s44, 96\ns_lshr_b32 s45, s31, 4\ns_lshl_b32 s45, s45, 5\ns_add_u32 s44, s44, s45\ns_add_u32 s45, s44, 4\ns_add_u32 s46, s44, 16\ns_add_u32 s47, s44, 20")
    a("C_mapped:")
    a("v_lshrrev_b32 v7, 4, v2\nv_and_b32 v5, 15, v2\nv_lshlrev_b32 v5, 4, v5\nv_mul_lo_u32 v6, v7, s35\nv_add_u32 v6, v6, v5")
    a("s_lshl_b32 s42, s30, 8\ns_mul_i32 s41, s41, s35")
    for g in range(4):
        a(f"s_mul_i32 s43, s{44+g}, s35\ns_add_u32 s43, s43, s42\ns_add_u32 m0, s40, {2048*g}\ns_nop 0\nbuffer_load_dwordx4 v6, s[16:19], s43 offen {nt} lds")
        a(f"s_add_u32 s43, s43, s41\ns_add_u32 m0, s40, {2048*g+1024}\ns_nop 0\nbuffer_load_dwordx4 v6, s[16:19], s43 offen {nt} lds")
    a("v_bfe_u32 v8, v2, 2, 2   ; r\nv_and_b32 v9, 3, v2   ; cc\nv_lshlrev_b32 v8, 8, v8\nv_lshl_add_u32 v8, v9, 3, v8\nv_add_u32 v8, s40, v8\nv_lshlrev_b32 v10, 2, v2")
    for i in range(4): a(f"v_mov_b32 v{48+i}, 0x3f803f80")
    a("s_cmp_eq_u32 s39, 1\ns_cbranch_scc1 C_rd3")
    a("v_lshl_add_u32 v8, v7, 11, v8\nv_cmp_eq_u32 s[52:53], 1, v7\nv_cmp_eq_u32 s[44:45], 2, v7\nv_cmp_eq_u32 s[46:47], 3, v7\ns_waitcnt vmcnt(0)")
    for q in range(8):
        a(f"ds_read_b64_tr_b16 v[{12+4*q}:{13+4*q}], v8 offset:{32*q}\nds_read_b64_tr_b16 v[{14+4*q}:{15+4*q}], v8 offset:{32*q+1024}")
    for q in range(8):
        a(f"s_lshl_b32 s43, s30, 3\ns_add_u32 s43, s43, {q}   ; T16\ns_mul_i32 s48, s43, 52429\ns_lshr_b32 s48, s48, 18   ; j\ns_mul_i32 s49, s48, 5\ns_sub_u32 s49, s43, s49   ; c")
        a("s_mul_i32 s48, s48, s38\ns_mul_i32 s50, s31, 5\ns_add_u32 s49, s49, s50\ns_lshl_b32 s49, s49, 10\ns_add_u32 s48, s48, s49\ns_add_u32 s48, s48, s37")
        a(f"s_waitcnt lgkmcnt({14-2*q})\nbuffer_store_dwordx4 v[{12+4*q}:{15+4*q}], v3, s[24:27], s48 offen {pst}")
    a("s_cmp_lg_u32 s39, 0\ns_cbranch_scc1 C_rdone")
    for q in range(8): a(f"v_mfma_f32_16x16x32_bf16 v[{64+4*q}:{67+4*q}], v[48:51], v[{12+4*q}:{15+4*q}], 0")
    a(f"s_mul_i32 s36, s31, {D*4}\ns_lshl_b32 s43, s30, 9\ns_add_u32 s36, s36, s43\ns_add_u32 s36, s36, {CS1}\ns_nop 7")
    for hb in range(2):
        b = 64+16*hb
        a(f"v_cndmask_b32 v{b}, v{b}, v{b+4}, s[52:53]\nv_cndmask_b32 v{b}, v{b}, v{b+8}, s[44:45]\nv_cndmask_b32 v{b}, v{b}, v{b+12}, s[46:47]\nbuffer_store_dword v{b}, v10, s[24:27], s36 offen offset:{256*hb}")
    a("s_branch C_rdone")
    a("C_rd3:")
    a("v_lshrrev_b32 v9, 1, v7\nv_lshl_add_u32 v8, v9, 11, v8\nv_and_b32 v9, 1, v7\nv_lshl_add_u32 v8, v9, 5, v8\nv_cmp_le_u32 vcc, 32, v2\ns_waitcnt vmcnt(0)")
    for q in range(8):
        hh, qq = q>>2, q&3
        off = hh*4096 + 64*qq
        a(f"ds_read_b64_tr_b16 v[{12+4*q}:{13+4*q}], v8 offset:{off}\nds_read_b64_tr_b16 v[{14+4*q}:{15+4*q}], v8 offset:{off+1024}")
    for q in range(8):
        hh, qq = q>>2, q&3
        a(f"s_lshl_b32 s43, s30, 2\ns_add_u32 s43, s43, {qq}   ; T32\ns_mul_i32 s48, s43, 43691\ns_lshr_b32 s48, s48, 17   ; J\ns_mul_i32 s49, s48, 3\ns_sub_u32 s49, s43, s49   ; tile")
        a(f"s_mul_i32 s48, s48, s38\ns_mul_i32 s50, s31, 6\ns_add_u32 s49, s49, s50\ns_add_u32 s49, s49, {3*hh}\ns_lshl_b32 s49, s49, 10\ns_add_u32 s48, s48, s49\ns_add_u32 s48, s48, s37")
        a(f"s_waitcnt lgkmcnt({14-2*q})\nbuffer_store_dwordx4 v[{12+4*q}:{15+4*q}], v3, s[24:27], s48 offen {pst}")
    for q in range(8):
        hh, qq = q>>2, q&3
        a(f"v_mfma_f32_32x32x16_bf16 v[{64+16*qq}:{79+16*qq}], v[48:51], v[{12+4*q}:{15+4*q}], {'0' if hh == 0 else f'v[{64+16*qq}:{79+16*qq}]'}")
    a(f"s_mul_i32 s36, s31, {F*4}\ns_lshl_b32 s43, s30, 9\ns_add_u32 s36, s36, s43\ns_add_u32 s36, s36, {CS3}\ns_nop 15")
    for hb in range(2):
        a(f"v_cndmask_b32 v{64+32*hb}, v{64+32*hb}, v{80+32*hb}, vcc\nbuffer_store_dword v{64+32*hb}, v10, s[24:27], s36 offen offset:{256*hb}")
    a("C_rdone:")
    pc_end(a, stamps, 0x3200000)
    a("C_qstat:")
    a(f"s_load_dwordx2 s[8:9], s[0:1], {KA['q']}")
    a(f"s_sub_u32 s29, s2, {NCONV}\ns_lshl_b32 s30, s29, 2\ns_add_u32 s30, s30, s28\ns_lshl_b32 s30, s30, 3\ns_cmp_ge_u32 s30, {S}\ns_cbranch_scc1 C_end")
    a("v_lshrrev_b32 v4, 4, v2\nv_and_b32 v5, 15, v2\nv_add_u32 v6, s30, v4   ; row\nv_mul_u32_u24 v7, 1280, v6\nv_lshl_add_u32 v7, v5, 4, v7")
    a("s_waitcnt lgkmcnt(0)")
    srd(a, 12, 8, S*D*2); srd(a, 24, 4, WS_BYTES)
    a("s_mov_b32 s31, 0")
    for p in range(2):
        for m in range(5): a(f"buffer_load_dwordx4 v[{32+20*p+4*m}:{35+20*p+4*m}], v7, s[12:15], s31 offen offset:{256*m} {ntq2}")
        a("s_add_u32 s31, s31, 5120")
    a(f"v_mov_b32 v12, 0\nv_mov_b32 v13, 0\nv_mov_b32 v14, 0\nv_mov_b32 v15, 0\nv_mov_b32 v16, 0x3f803f80\ns_mov_b32 s33, {FLAGS}\nv_lshlrev_b32 v17, 4, v0")
    a("s_cmp_lg_u32 s29, 0\ns_cbranch_scc1 C_nofl\nbuffer_store_dwordx4 v[12:15], v17, s[24:27], s33 offen\ns_add_u32 s33, s33, 4096\nbuffer_store_dwordx4 v[12:15], v17, s[24:27], s33 offen\nC_nofl:")
    a(f"v_lshlrev_b32 v8, 6, v6\nv_lshl_add_u32 v8, v5, 4, v8\ns_mov_b32 s33, {STX}\nv_cmp_eq_u32 s[36:37], 0, v5\nv_cmp_gt_u32 s[34:35], 4, v5")
    for p in range(2):
        a(f"v_mov_b32 v20, 0\nv_mov_b32 v21, 0\ns_waitcnt vmcnt({5-5*p})")
        for i in range(20): a(f"v_dot2c_f32_bf16 v20, v{32+20*p+i}, v16\nv_dot2c_f32_bf16 v21, v{32+20*p+i}, v{32+20*p+i}")
        a("s_nop 2")
        for sh in (8, 4, 2, 1):
            a(f"v_add_f32_dpp v20, v20, v20 row_ror:{sh} row_mask:0xf bank_mask:0xf\nv_add_f32_dpp v21, v21, v21 row_ror:{sh} row_mask:0xf bank_mask:0xf\ns_nop 0")
        a(f"v_cndmask_b32 v12, 0, v20, s[36:37]\nv_cndmask_b32 v13, 0, v21, s[36:37]\nv_cmp_gt_u32 vcc, {S-4*p}, v6\ns_nop 3\ns_and_b64 exec, vcc, s[34:35]")
        l = a.label("C_q")
        a(f"s_cbranch_execz {l}\nbuffer_store_dwordx4 v[12:15], v8, s[24:27], s33 offen offset:{256*p}\n{l}:\ns_mov_b64 exec, -1\ns_nop 0")
    pc_end(a, stamps, 0x3200000)
    a("C_end:\ns_endpgm")
```

```python
KVT  = 0x0000000
import os
TS   = int(os.environ.get("TS", 20480))
HTS  = int(os.environ.get("HTS", 49152))
Y    = 0x0300000
WP1  = 0x0580000
WP2  = WP1 + 0xC8000
WP3  = WP2 + 0xC8000
WP4  = WP3 + 0x1E0000
CS1  = WP4 + 0x1E0000
CS3  = CS1 + 20*640*4
FLAGS= CS1 + 0x2B000
XID  = FLAGS + 0x1000
F1   = FLAGS + 0x2000
XA   = KVT
L0   = 0x1B00000
LD   = -0x1000000
XA2  = 0x1700000
X1   = L0
HSF  = Y
HS   = L0 + 0x300000
H    = HS + 128*TS
SN0  = H + 128*HTS
SD   = 0x88000
STX  = SN0
STA  = SN0 + 0x20000
ST1  = SN0 + 0x40000
HALO = SN0 + 0x60000
FILL1 = (SN0 - HS)//1024
FILLN = FILL1 + (2*SD - 0x20000)//1024
WS_BYTES = 0x10000000
S, D, F = 2048, 640, 1536

def kmap640(s, g, jj):
    if s < 16:
        return 80*(s>>1) + 32*(s&1) + 16*(jj>>2) + 4*g + (jj&3)
    m = s-16
    return 80*(2*m + (g>>1)) + 64 + 8*(g&1) + jj
def kmap1536(s, g, jj):
    return 96*(s&15) + 32*(s>>4) + 16*(g>>1) + 8*(jj>>2) + 4*(g&1) + (jj&3)
```

```python
from asmlib import *
from layout import *
from gen_pc import KA
import struct
def f2h(x): return hex(struct.unpack("<I", struct.pack("<f", x))[0])

RING = 156
LDS_Y = 146*1024
LDS_CS = RING*1024
LDS_SY = LDS_CS + 768
M_LDS = LDS_SY + 1024
SEG = [(0,100), (100,200), (200,320), (320,560)]
TAIL0 = 320 + RING
A0C, A1C = -2.302208198, -0.1029432397
sWS, sQ, sOUT = 4, 8, 12
sI, sJ, sW, sMODE, sLAYER, sPH, sBUD, sFLAG = 16, 17, 18, 19, 20, 21, 22, 23
sK = 24
sMmain, sMmainS, sMhalo, sMhaloS, sMr02 = 36, 38, 40, 42, 44
sHZ = 46
sBND = 47
sT = 48
sXA, sX1, sSN, sMODEH = 60, 61, 62, 63
sSEG = 60
sSP = 64
sP4 = 80
sST = 84
vL = [4,5,6]
vT16, vWf, vWs, vSTw, vSTr, vSTr3 = 7, 8, 9, 10, 11, 12
vF = [13,14,15,16]
vH = [17,18,19,20]
vSf, vSs, vHP, vX3, vH3w, vH4, vCS1, vCS3, vOut, vRD = 21, 22, 23, 24, 25, 26, 27, 28, 29, 31
vFA, vFI, vLA, vLN = 250, 251, 252, 253
sH80 = 82
vM, vR1, vA0, vA1, vRI, vNM = 32, 34, 36, 38, 30, 2
ACC4, YF, XAF, ACC, ACC3 = 40, 60, 80, 100, 80
PK, SW = 128, 140
AB, BB = 152, 192
STL = 232
TMP = 240

class VM:
    def __init__(self): self.q = []
    def issue(self, tag): self.q.append(tag)
    def need(self, *tags):
        last = -1
        for i, t in enumerate(self.q):
            if t in tags: last = i
        if last < 0: return None
        self.q = self.q[last+1:]
        return len(self.q)
    def drain(self): self.q = []

def gen_M(a, stamps=False, pk=True, **opt):
    events = []
    ool = []
    e = a
    vm = VM()
    lg = VM()
    frees = []
    levels = []
    chk = dict(landed=0)
    def dsop(txt, tag):
        a(txt); lg.issue(tag)
    def lwait0():
        a("s_waitcnt lgkmcnt(0)"); lg.drain()
    def free_pt(pos):
        frees.append(pos); dsop(f"ds_add_u32 v{vFA}, v{vFI}", 'fr')
    def land_read():
        dsop(f"ds_read_b32 v{vLN}, v{vLA}", 'ln')
    def land_check(pos):
        levels.append(pos); n = len(levels); chk['landed'] = pos
        l, o = a.label("M_lsp"), a.label("M_lspo")
        c = f"v_subrev_u32 v{vLN}, {hex(n*0x01010101)}, v{vLN}\nv_and_b32 v{vLN}, s{sH80}, v{vLN}\nv_cmp_ne_u32 vcc, s{sH80}, v{vLN}\ns_cbranch_vccnz {l}"
        a(f"{c}\n{o}:")
        ool.append(f"{l}:\nds_read_b32 v{vLN}, v{vLA}\ns_cmp_eq_u32 s{sBUD}, 0\ns_cbranch_scc1 {o}\ns_sub_u32 s{sBUD}, s{sBUD}, 1\ns_waitcnt lgkmcnt(0)\n{c}\ns_branch {o}")
    snames = []
    def stamp(nm):
        if stamps and opt.get('kst') and nm in ('stored', 'stx polled', 'xa pub', 'h pub', 'x1 pub', 'polled') : return
        if stamps:
            n = len(snames); snames.append(nm)
            cur, prv = sST + 2*(n % 4), sST + 2*((n-2) % 4)
            if nm == "start":
                a(f"s_memrealtime s[{cur}:{cur+1}]\ns_memtime s[92:93]")
                return
            if nm == "prolog":
                a(f"s_mov_b32 m0, 0\ns_memrealtime s[{cur}:{cur+1}]")
                for k in range(3): a(f"v_writelane_b32 v255, s{96+2*k}, {58+k}")
                return
            a(f"v_writelane_b32 v255, s{prv}, m0\ns_add_u32 m0, m0, 1\n{'s_memtime' if opt.get('cyc') else 's_memrealtime'} s[{cur}:{cur+1}]")
    gen_M.snames = snames
    def mstore(instrs, tag=None, mode=sMODE):
        l1, l2 = a.label("M_slow"), a.label("M_back")
        a(f"s_cmp_lg_u32 s{mode}, 0\ns_cbranch_scc1 {l1}")
        for s in instrs:
            a(s.replace("{m}", ""))
            if s.startswith("buffer_"): vm.issue(tag)
        a(f"{l2}:")
        ool.append(f"{l1}:\n" + "\n".join(s.replace("{m}", "sc1") for s in instrs) + f"\ns_branch {l2}")
    def vwait(*tags):
        n = vm.need(*tags)
        if n is not None: a(f"s_waitcnt vmcnt({n})")
    def flag(level):
        a(f"s_add_u32 s{sT+2}, s{sPH}, {level}\nv_mov_b32 v1, s{sT+2}\ns_mov_b64 exec, 1")
        mstore([f"buffer_store_dword v1, off, s[{sWS}:{sWS+3}], s{sFLAG} {{m}}"], 'fl')
        a("s_mov_b64 exec, -1")
    def spin(l, o, load, check):
        return f"{l}:\n{load}\ns_cmp_eq_u32 s{sBUD}, 0\ns_cbranch_scc1 {o}\ns_sub_u32 s{sBUD}, s{sBUD}, 1\ns_waitcnt vmcnt(0)\n{check} {l}"
    def poll(vaddr):
        l, o = a.label("M_poll"), a.label("M_pout")
        a(spin(l, o, f"buffer_load_dword v1, v{vaddr}, s[{sWS}:{sWS+3}], 0 offen sc1", f"v_cmp_gt_u32 vcc, s{sT+2}, v1\ns_cbranch_vccnz") + f"\n{o}:")
        vm.drain()
    def poll_issue(vaddr):
        a(f"buffer_load_dword v3, v{vaddr}, s[{sWS}:{sWS+3}], 0 offen sc1"); vm.issue('pl')
    def poll_check(vaddr, level):
        l, o = a.label("M_sp"), a.label("M_spo")
        a(f"s_add_u32 s{sT+3}, s{sPH}, {level}\nv_cmp_gt_u32 vcc, s{sT+3}, v3\ns_cbranch_vccnz {l}\n{o}:")
        ool.append(spin(l, o, f"buffer_load_dword v3, v{vaddr}, s[{sWS}:{sWS+3}], 0 offen sc1", f"v_cmp_gt_u32 vcc, s{sT+3}, v3\ns_cbranch_vccnz") + f"\ns_branch {o}")
    def sent_chk(dst, n):
        r = f"v_max3_u32 v1, v{dst}, v{dst+1}, v{dst+2}\n"
        i = 3
        while i < n:
            if i+1 < n: r += f"v_max3_u32 v1, v1, v{dst+i}, v{dst+i+1}\n"; i += 2
            else: r += f"v_max_u32 v1, v1, v{dst+i}\n"; i += 1
        return r + "v_cmp_eq_u32 vcc, -1, v1\ns_cbranch_vccnz"
    def sent_load(vaddr, soff, dst, n):
        return "\n".join(f"buffer_load_dwordx4 v[{dst+4*k}:{dst+4*k+3}], v{vaddr}, s[{sWS}:{sWS+3}], {soff} offen offset:{16*k} sc1" for k in range(n//4))
    def poll_sent(vaddr, soff, dst):
        l, o = a.label("M_poll"), a.label("M_pout")
        a(spin(l, o, sent_load(vaddr, soff, dst, 4), sent_chk(dst, 4)) + f"\n{o}:\ns_waitcnt vmcnt(0)")
        vm.drain()
    def late_sent(vaddr, soff, dst, n):
        l, o = a.label("M_sp"), a.label("M_spo")
        a(f"{sent_chk(dst, n)} {l}\n{o}:")
        ool.append(spin(l, o+"x", sent_load(vaddr, soff, dst, n), sent_chk(dst, n)) + f"\n{o}x:\ns_waitcnt vmcnt(0)\ns_branch {o}")
    def lds_a(p):
        off = (p % RING)*1024
        return vL[off >> 16], off & 0xffff
    def unpack(dst, src, n):
        for i in range(n):
            a(f"v_lshlrev_b32 v{dst+2*i}, 16, v{src+i}\nv_and_b32 v{dst+2*i+1}, 0xffff0000, v{src+i}")
    def pack16(src):
        for i in range(10): a(f"v_cvt_pk_bf16_f32 v{PK+i}, v{src+2*i}, v{src+2*i+1}")
        swap16()
    def swap16():
        a(f"v_mov_b32 v{SW}, v{PK+8}\nv_mov_b32 v{SW+1}, v{PK+9}\nv_mov_b32 v{SW+2}, v{PK+8}\nv_mov_b32 v{SW+3}, v{PK+9}\ns_nop 0")
        a(f"v_permlane16_swap_b32 v{SW}, v{SW+2}\nv_permlane16_swap_b32 v{SW+1}, v{SW+3}")
    def part_stats():
        a(f"v_mov_b32 v{TMP}, 0\nv_mov_b32 v{TMP+1}, 0\nv_mov_b32 v{TMP+2}, 0x3f803f80")
        for i in range(10):
            a(f"v_dot2c_f32_bf16 v{TMP}, v{PK+i}, v{TMP+2}\nv_dot2c_f32_bf16 v{TMP+1}, v{PK+i}, v{PK+i}")
        a(f"s_nop 2\nv_permlane16_swap_b32 v{TMP}, v{TMP+1}\nv_add_f32 v{TMP}, v{TMP}, v{TMP+1}\nv_mov_b32 v{TMP+1}, v{TMP}\ns_nop 1")
        a(f"v_permlane32_swap_b32 v{TMP}, v{TMP+1}\nv_add_f32 v{TMP+3}, v{TMP}, v{TMP+1}")
    def store_stats(base):
        a(f"s_add_u32 s{sT}, s{sSN}, {base-SN0}\ns_mov_b32 exec_hi, 0")
        mstore([f"buffer_store_dword v{TMP+3}, v{vSTw}, s[{sWS}:{sWS+3}], s{sT} offen {{m}}"], 'ss')
        a("s_mov_b64 exec, -1")
    def store_slice(sb):
        mstore([f"buffer_store_dwordx4 v[{PK}:{PK+3}], v{vWf}, s[{sWS}:{sWS+3}], s{sb} offen {{m}}",
                f"buffer_store_dwordx4 v[{PK+4}:{PK+7}], v{vWf}, s[{sWS}:{sWS+3}], s{sb} offen offset:1024 {{m}}",
                f"s_mov_b64 exec, s[{sMr02}:{sMr02+1}]",
                f"buffer_store_dwordx4 v[{SW}:{SW+3}], v{vWs}, s[{sWS}:{sWS+3}], s{sb} offen {{m}}",
                "s_mov_b64 exec, -1"], 'ds')
    def fin_stats16():
        a(f"v_add_f32 v1, v{STL}, v{STL+2}\nv_add_f32 v3, v{STL+1}, v{STL+3}\ns_nop 1\nv_permlane16_swap_b32 v1, v3\nv_add_f32 v1, v1, v3\nv_mov_b32 v3, v1\ns_nop 1")
        a("v_permlane32_swap_b32 v1, v3\nv_add_f32 v1, v1, v3\nv_mov_b32 v3, v1\ns_nop 1\nv_permlane16_swap_b32 v1, v3")
    def fin_stats32():
        a(f"v_add_f32 v1, v{STL}, v{STL+2}\nv_add_f32 v3, v{STL+1}, v{STL+3}\nv_add_f32 v{STL}, v{STL+4}, v{STL+6}\nv_add_f32 v{STL+1}, v{STL+5}, v{STL+7}")
        a(f"v_add_f32 v1, v1, v{STL}\nv_add_f32 v3, v3, v{STL+1}\nv_mov_b32 v{STL}, v1\nv_mov_b32 v{STL+1}, v3\ns_nop 0")
        a(f"v_permlane32_swap_b32 v1, v{STL}\nv_permlane32_swap_b32 v3, v{STL+1}\nv_add_f32 v1, v1, v{STL}\nv_add_f32 v3, v3, v{STL+1}")
    def mean_rstd(m, r):
        a(f"v_mul_f32 v{m}, {f2h(1/640)}, v1\nv_mul_f32 v3, {f2h(1/640)}, v3\nv_fma_f32 v3, -v{m}, v{m}, v3\nv_max_f32 v3, 0, v3")
        a(f"v_add_f32 v1, {f2h(1e-5)}, v3\nv_rsq_f32 v{r}, v1\ns_nop 0")
    def gelu_consts(r, m):
        a(f"v_mul_f32 v{vA0}, {f2h(A0C)}, v{r}\nv_mul_f32 v1, v{r}, v{r}\nv_mul_f32 v1, v1, v{r}\nv_mul_f32 v{vA1}, {f2h(A1C)}, v1\nv_rcp_f32 v{vRI}, v{r}\nv_sub_f32 v{vNM}, 0, v{m}")
    bc = lambda r: f"v[{r}:{r+1}]"
    def gelu(acc, cs, dst, npairs):
        for i0 in range(0, npairs, 2):
            P = [(acc+2*i, cs+2*i, dst+i, TMP+4*(i-i0)) for i in range(i0, min(i0+2, npairs))]
            if pk:
                for x,c,d,t in P: a(f"v_pk_fma_f32 v[{x}:{x+1}], v[{c}:{c+1}], {bc(vNM)}, v[{x}:{x+1}] op_sel_hi:[1,0,1]")
                for x,c,d,t in P: a(f"v_pk_mul_f32 v[{t}:{t+1}], v[{x}:{x+1}], v[{x}:{x+1}]")
                for x,c,d,t in P: a(f"v_pk_fma_f32 v[{t}:{t+1}], v[{t}:{t+1}], {bc(vA1)}, {bc(vA0)} op_sel_hi:[1,0,0]")
                for x,c,d,t in P: a(f"v_pk_mul_f32 v[{t}:{t+1}], v[{t}:{t+1}], v[{x}:{x+1}]")
                for x,c,d,t in P: a(f"v_exp_f32 v{t}, v{t}\nv_exp_f32 v{t+1}, v{t+1}")
                if len(P) == 1: a("s_nop 0")
                for x,c,d,t in P: a(f"v_pk_fma_f32 v[{t}:{t+1}], v[{t}:{t+1}], {bc(vRI)}, {bc(vRI)} op_sel_hi:[1,0,0]") if (x,c,d,t) != P[-1] or len(P) == 1 else a(f"v_pk_fma_f32 v[{t}:{t+1}], v[{t}:{t+1}], {bc(vRI)}, {bc(vRI)} op_sel_hi:[1,0,0]")
                for x,c,d,t in P: a(f"v_rcp_f32 v{t}, v{t}\nv_rcp_f32 v{t+1}, v{t+1}")
                if len(P) == 1: a("s_nop 0")
                for x,c,d,t in P: a(f"v_pk_mul_f32 v[{t}:{t+1}], v[{t}:{t+1}], v[{x}:{x+1}]")
                for x,c,d,t in P: a(f"v_cvt_pk_bf16_f32 v{d}, v{t}, v{t+1}")
            else:
                E = [(x+k, c+k, t+k) for x,c,d,t in P for k in range(2)]
                for x,c,t in E: a(f"v_fmac_f32 v{x}, v{c}, v{vNM}")
                for x,c,t in E: a(f"v_mul_f32 v{t}, v{x}, v{x}")
                for x,c,t in E: a(f"v_fma_f32 v{t}, v{t}, v{vA1}, v{vA0}")
                for x,c,t in E: a(f"v_mul_f32 v{t}, v{t}, v{x}")
                for x,c,t in E: a(f"v_exp_f32 v{t}, v{t}")
                for x,c,t in E: a(f"v_fma_f32 v{t}, v{t}, v{vRI}, v{vRI}")
                for x,c,t in E: a(f"v_rcp_f32 v{t}, v{t}")
                for x,c,t in E: a(f"v_mul_f32 v{t}, v{t}, v{x}")
                for x,c,d,t in P: a(f"v_cvt_pk_bf16_f32 v{d}, v{t}, v{t+1}")
    def bissue(bload, s, ring):
        a(bload(s, ring[s % len(ring)])); vm.issue(('B', s))
    def gemm(ns, p0, nper, mf, accw, acc, bload, ring, first_c0, need0, needs, fpts, hooks={}, waits={}, pre=False):
        NR = len(ring); D = NR - 1
        if not pre:
            stamp('polled')
            for s in range(min(D, ns)): bissue(bload, s, ring)
        land_read(); lwait0(); land_check(need0)
        stamp('bar a')
        def aread(s, c):
            assert p0 + s*nper + c < chk['landed'], (p0, s, c, chk)
            v, off = lds_a(p0 + s*nper + c); r = AB + (s&1)*4*nper + 4*c
            dsop(f"ds_read_b128 v[{r}:{r+3}], v{v} offset:{off}", ('A', s))
        for s in range(2):
            for c in range(nper): aread(s, c)
        for s in range(ns):
            n = vm.need(('B', s), *waits.get(s, ()))
            m = lg.need(('A', s), *(['ln'] if s in needs else []))
            a(f"s_waitcnt {'' if n is None else f'vmcnt({n}) '}lgkmcnt({15 if m is None else m})")
            if s in needs: land_check(needs[s])
            for h in hooks.get(s, ()): h()
            if opt.get('kst') and ns >= 40 and s % 8 == 0: stamp(f'k{s}')
            b = ring[s % NR]
            for c in range(nper):
                r = AB + (s&1)*4*nper + 4*c; d = acc + accw*c
                cin = "0" if (s == 0 and first_c0) else f"v[{d}:{d+accw-1}]"
                if not opt.get('nomfma') or s == 0: a(f"{mf} v[{d}:{d+accw-1}], v[{r}:{r+3}], v[{b}:{b+3}], {cin}")
                if c == 0 and s+1 in needs: land_read()
                if s+2 < ns and not opt.get('noa'): aread(s+2, c)
                if c == 1 and s+D < ns and not opt.get('nob'): bissue(bload, s+D, ring)
                if c == 2 and s in fpts: free_pt(p0 + (s+1)*nper)
        stamp('kloop')
    def bl16(vaddr_of):
        return lambda s, r: f"buffer_load_dwordx4 v[{r}:{r+3}], v{vaddr_of(s)}, s[{sWS}:{sWS+3}], s{sK+(s>>2)} offen offset:{(s&3)*1024} sc1"
    def mkhooks(*lists):
        h = {}
        for l in lists:
            for k, f in l: h.setdefault(k, []).append(f)
        return h
    R10 = [BB+4*i for i in range(10)]
    R12 = R10 + [120, 124]
    M16, M32 = "v_mfma_f32_16x16x32_bf16", "v_mfma_f32_32x32x16_bf16"

    a(kernel_header("main_kernel"))
    a("s_cmp_ge_u32 s2, 256\ns_cbranch_scc1 M_end")
    stamp("start")
    a(f"s_load_dwordx2 s[{sT}:{sT+1}], s[0:1], {KA['ws']}\ns_load_dwordx2 s[{sT+2}:{sT+3}], s[0:1], {KA['q']}\ns_load_dwordx4 s[{sT+4}:{sT+7}], s[0:1], {KA['out']}")
    a(f"v_lshrrev_b32 v1, 6, v0\nv_and_b32 v0, 63, v0\nv_lshlrev_b32 v{vL[0]}, 4, v0\nv_readfirstlane_b32 s{sW}, v1")
    a(f"s_and_b32 s{sI}, s2, 7\ns_lshr_b32 s3, s2, 3\ns_and_b32 s{sJ}, s3, 7\ns_lshr_b32 s3, s3, 3\ns_lshl_b32 s{sI}, s{sI}, 2\ns_add_u32 s{sI}, s{sI}, s3")
    a(f"s_and_b32 s3, s{sI}, 1\ns_lshl_b32 s3, s3, 3\ns_add_u32 s3, s3, s{sJ}   ; J")
    a(f"s_mov_b32 s{sLAYER}, 0")
    a(f"s_mov_b32 s{sH80}, 0x80808080\nv_mov_b32 v2, s{sH80}\nv_lshlrev_b32 v3, 2, v0\nv_add_u32 v3, {LDS_SY}, v3\nds_write_b32 v3, v2")
    a(f"s_and_b32 s{sT+8}, s{sW}, 3\ns_lshl_b32 s{sT+8}, s{sT+8}, 3\ns_lshl_b32 s{sT+8}, 1, s{sT+8}\nv_cmp_eq_u32 vcc, 0, v0\nv_add_u32 v{vFA}, 256, v3\nv_mov_b32 v{vLA}, {LDS_SY}\nv_mov_b32 v{vFI}, s{sT+8}\nv_cndmask_b32 v{vFA}, v{vFA}, v{vLA}, vcc")
    a(f"s_cmp_ge_u32 s{sW}, 4\ns_cbranch_scc1 M_loader")
    a(f"v_mov_b32 v{vLA}, {LDS_SY+8}")
    a(f"v_and_b32 v32, 15, v0   ; t\nv_lshrrev_b32 v33, 4, v0   ; g")
    a(f"s_lshl_b32 s{sT+8}, s{sI}, 2\ns_add_u32 s{sT+8}, s{sT+8}, s{sW}   ; tile16\ns_lshl_b32 s{sT+9}, s{sT+8}, 4")
    a(f"v_add_u32 v34, s{sT+9}, v32   ; token")
    a(f"s_mul_i32 s{sT+10}, s{sJ}, 160\nv_mul_u32_u24 v{vOut}, 1280, v34\nv_lshl_add_u32 v{vOut}, v33, 3, v{vOut}\nv_add_u32 v{vOut}, s{sT+10}, v{vOut}")
    a(f"s_mul_i32 s{sT+10}, s{sJ}, {80*4096}\ns_lshl_b32 s{sT+11}, s{sT+9}, 1\ns_add_u32 s{sT+10}, s{sT+10}, s{sT+11}\ns_add_u32 s{sT+10}, s{sT+10}, {Y}")
    a(f"v_lshrrev_b32 v35, 1, v0\nv_lshlrev_b32 v35, 12, v35\nv_and_b32 v36, 1, v0\nv_lshl_add_u32 v35, v36, 4, v35")
    a("s_waitcnt lgkmcnt(0)")
    if stamps: a("s_memrealtime s[96:97]")
    srd(a, sWS, sT, WS_BYTES); srd(a, sQ, sT+2, S*D*2); srd(a, sOUT, sT+4, S*D*2)
    a(f"s_mov_b32 s{sP4}, s{sT}\ns_mov_b32 s{sP4+1}, s{sT+1}")
    for c in range(5): a(f"buffer_load_dwordx2 v[{PK+2*c}:{PK+2*c+1}], v{vOut}, s[{sQ}:{sQ+3}], 0 offen offset:{32*c} {opt.get('ntq','nt')}")
    a(f"v_lshlrev_b32 v38, 6, v34   ; token*64\nv_lshl_add_u32 v{vSTr}, v33, 4, v38\ns_mov_b32 s{sSN}, {SN0}\nbuffer_load_dwordx4 v[{STL}:{STL+3}], v{vSTr}, s[{sWS}:{sWS+3}], s{sSN} offen")
    a(f"s_mul_i32 s{sT+11}, s{sW}, 2560\ns_add_u32 s{sT+11}, s{sT+11}, {LDS_Y}")
    for m in range(3):
        if m == 2: a("s_mov_b32 exec_hi, 0")
        a(f"s_add_u32 m0, s{sT+11}, {1024*m}\ns_nop 0\nbuffer_load_dwordx4 v35, s[{sWS}:{sWS+3}], s{sT+10} offen lds\ns_add_u32 s{sT+10}, s{sT+10}, {32*4096}")
    a(f"s_mov_b32 s{sT+10}, {LDS_CS}")
    a(f"s_getreg_b32 s{sT}, hwreg(HW_REG_XCC_ID)\ns_and_b32 s{sT}, s{sT}, 15\ns_add_u32 s{sT}, s{sT}, 1\nv_mov_b32 v1, s{sT}")
    a(f"s_lshl_b32 s{sT+1}, s{sI}, 3\ns_add_u32 s{sT+1}, s{sT+1}, s{sJ}\ns_lshl_b32 s{sT}, s{sT+1}, 2\ns_add_u32 s{sT}, s{sT}, {XID}\ns_mov_b64 exec, 1")
    a(f"s_cmp_lg_u32 s{sW}, 0\ns_cbranch_scc1 M_noxid\nbuffer_store_dword v1, off, s[{sWS}:{sWS+3}], s{sT} sc1\nM_noxid:\ns_mov_b64 exec, -1")
    a("s_waitcnt lgkmcnt(0)\ns_barrier")
    if stamps: a("s_memrealtime s[98:99]")
    a(f"s_lshr_b32 s{sT+1}, s{sI}, 1\ns_lshl_b32 s{sT+1}, s{sT+1}, 8\ns_add_u32 s{sT+1}, s{sT+1}, {FLAGS}\ns_lshl_b32 s{sT}, s{sW}, 4\ns_add_u32 s{sT}, s{sT}, s3\ns_lshl_b32 s{sT}, s{sT}, 2\ns_add_u32 s{sFLAG}, s{sT}, s{sT+1}")
    a(f"s_mov_b32 s{sXA}, {XA}\ns_mov_b32 s{sSN}, {SN0}\ns_mov_b32 s{sMODEH}, 1")
    a(f"s_mov_b32 s{sPH}, 0\ns_mov_b32 s{sBUD}, 400000")
    for n in range(12): a(f"s_mov_b32 s{sK+n}, {4096*n}")
    a(f"s_mov_b32 s{sMr02}, 0xffff\ns_mov_b32 s{sMr02+1}, 0xffff")
    a(f"v_add_u32 v{vL[1]}, 0x10000, v{vL[0]}\nv_add_u32 v{vL[2]}, 0x20000, v{vL[0]}")
    a(f"s_mul_i32 s{sT}, s{sT+8}, {TS}\nv_add_u32 v{vT16}, s{sT}, v{vL[0]}\ns_lshl_b32 s{sT+2}, s{sJ}, 11\nv_add_u32 v{vWf}, s{sT+2}, v{vT16}")
    a(f"s_lshr_b32 s{sT+3}, s{sJ}, 1\ns_add_u32 s{sT+3}, s{sT+3}, 16\ns_lshl_b32 s{sT+3}, s{sT+3}, 10\ns_and_b32 s{sT+4}, s{sJ}, 1   ; j&1\ns_lshl_b32 s{sT+5}, s{sT+4}, 9\ns_add_u32 s{sT+5}, s{sT+5}, s{sT+3}")
    a(f"v_lshrrev_b32 v36, 1, v33   ; g>>1\nv_lshlrev_b32 v37, 8, v36\nv_lshl_add_u32 v37, v32, 4, v37\ns_add_u32 s{sT}, s{sT}, s{sT+5}\nv_add_u32 v{vWs}, s{sT}, v37")
    a(f"v_lshlrev_b32 v38, 6, v34   ; token*64\nv_and_b32 v39, 1, v33\nv_lshl_add_u32 v39, v39, 2, v38\ns_lshl_b32 s{sT}, s{sJ}, 3\nv_add_u32 v{vSTw}, s{sT}, v39\nv_lshl_add_u32 v{vSTr}, v33, 4, v38")
    a(f"v_and_b32 v40, 31, v0\nv_lshrrev_b32 v41, 5, v0   ; h\ns_lshr_b32 s{sT}, s{sI}, 1\ns_lshl_b32 s{sT}, s{sT}, 7\ns_lshl_b32 s{sT+6}, s{sW}, 5\ns_add_u32 s{sT}, s{sT}, s{sT+6}\nv_add_u32 v42, s{sT}, v40   ; token32")
    a(f"v_lshlrev_b32 v{vSTr3}, 6, v42\nv_lshl_add_u32 v{vSTr3}, v41, 5, v{vSTr3}")
    a(f"v_lshrrev_b32 v43, 4, v42   ; tile16\nv_lshlrev_b32 v44, 8, v41\nv_lshl_add_u32 v44, v32, 4, v44   ; h*256 + t*16")
    a(f"v_mul_u32_u24 v{vX3}, {TS}, v43\nv_add_u32 v{vX3}, v{vX3}, v44")
    a(f"v_mul_u32_u24 v{vH3w}, {HTS}, v43\nv_add_u32 v{vH3w}, v{vH3w}, v44\ns_lshl_b32 s{sT}, s3, 10\ns_add_u32 s{sT}, s{sT}, {H}\nv_add_u32 v{vH3w}, s{sT}, v{vH3w}")
    a(f"s_mul_i32 s{sT}, s{sT+8}, {HTS}\ns_add_u32 s{sT}, s{sT}, {H}\nv_add_u32 v{vH4}, s{sT}, v{vL[0]}")
    a(f"v_lshlrev_b32 v{vCS1}, 4, v33\nv_add_u32 v{vCS1}, s{sT+10}, v{vCS1}\nv_lshlrev_b32 v{vCS3}, 4, v41\ns_add_u32 s{sT}, s{sT+10}, 320\nv_add_u32 v{vCS3}, s{sT}, v{vCS3}")
    a(f"v_and_b32 v45, 7, v0   ; j'\nv_bfe_u32 v46, v0, 3, 1   ; second\nv_and_b32 v47, 15, v0\nv_lshlrev_b32 v48, 2, v45")
    a(f"s_and_b32 s{sT}, s{sI}, 1\ns_lshl_b32 s{sT}, s{sT}, 5\ns_add_u32 s{sT}, s{sT}, s{sT+1}\ns_lshl_b32 s{sT+6}, s{sW}, 6\ns_add_u32 s{sT+7}, s{sT}, s{sT+6}\nv_add_u32 v{vF[0]}, s{sT+7}, v48")
    a(f"v_bfe_u32 v49, v45, 1, 1\nv_lshlrev_b32 v49, 1, v49\nv_subrev_u32 v49, 1, v49   ; -sign\nv_mul_i32_i24 v49, v49, v46\nv_add_u32 v49, s{sW}, v49\nv_max_i32 v49, 0, v49\nv_min_i32 v49, 3, v49")
    a(f"v_lshl_add_u32 v49, v49, 6, v48\nv_add_u32 v{vF[1]}, s{sT}, v49")
    a(f"s_lshr_b32 s{sT+6}, s{sW}, 1\ns_lshl_b32 s{sT+7}, s{sT+6}, 5\ns_and_b32 s{sT+11}, s{sW}, 1\ns_lshl_b32 s{sT+11}, s{sT+11}, 7\ns_add_u32 s{sT+7}, s{sT+7}, s{sT+11}\ns_add_u32 s{sT+7}, s{sT+7}, s{sT+1}")
    a(f"v_lshl_add_u32 v49, v46, 6, v48\nv_add_u32 v{vF[2]}, s{sT+7}, v49")
    a(f"s_and_b32 s{sT+11}, s{sI}, 1\ns_lshl_b32 s{sT+11}, s{sT+11}, 1\ns_add_u32 s{sT+11}, s{sT+11}, s{sT+6}\ns_lshl_b32 s{sT+11}, s{sT+11}, 6\ns_add_u32 s{sT+7}, s{sT+11}, s{sT+1}")
    a(f"v_lshlrev_b32 v49, 2, v47\nv_add_u32 v{vF[3]}, s{sT+7}, v49\ns_add_u32 s{sP4}, s{sP4}, s{sT+7}\ns_addc_u32 s{sP4+1}, s{sP4+1}, 0")
    a(f"s_and_b32 s{sT}, s{sI}, 30\ns_lshl_b32 s{sT+7}, s{sT}, 5\ns_add_u32 s{sT+7}, s{sT+7}, {XID}\nv_add_u32 v50, s{sT+7}, v49")
    a(f"s_cmp_eq_u32 s{sW}, 3\ns_cselect_b32 s{sT+6}, 1, 0   ; side\ns_cmp_eq_u32 s{sW}, 0\ns_cselect_b32 s{sBND}, 1, s{sT+6}")
    a(f"s_lshr_b32 s{sT}, s{sI}, 2\ns_mul_i32 s{sT}, s{sT}, 20480\ns_and_b32 s{sT+7}, s{sI}, 3\ns_lshl_b32 s{sT+7}, s{sT+7}, 1\ns_add_u32 s{sT+7}, s{sT+7}, s{sT+6}\ns_lshl_b32 s{sT+7}, s{sT+7}, 7\ns_add_u32 s{sT}, s{sT}, s{sT+7}\ns_add_u32 s{sT}, s{sT}, {HALO}")
    a(f"v_and_b32 v51, 1, v32\nv_lshl_add_u32 v51, v33, 1, v51\nv_lshlrev_b32 v51, 4, v51\nv_add_u32 v51, s{sT}, v51\nv_add_u32 v52, {HS}, v{vT16}")
    a(f"s_lshl_b32 s{sT+7}, s{sW}, 4\nv_add_u32 v53, s{sT+7}, v32")
    for q, sg in enumerate((1,-1,2,-2)):
        a(f"v_add_u32 v54, {-sg}, v53\nv_cmp_gt_u32 vcc, 64, v54\ns_nop 1\nv_cndmask_b32 v{vH[q]}, v51, v52, vcc")
    a(f"v_subrev_u32 v54, 20, v0\nv_cmp_gt_u32 vcc, 40, v54\nv_lshrrev_b32 v55, 3, v54\nv_and_b32 v56, 7, v54")
    a(f"v_cmp_gt_u32 s[{sT+2}:{sT+3}], 20, v0\nv_lshrrev_b32 v57, 2, v0\nv_and_b32 v58, 3, v0\nv_lshlrev_b32 v58, 1, v58\nv_add_u32 v58, s{sT+6}, v58   ; A set")
    a(f"v_cndmask_b32 v57, 0, v57, s[{sT+2}:{sT+3}]\nv_mov_b32 v59, s{sT+6}\nv_cndmask_b32 v58, v59, v58, s[{sT+2}:{sT+3}]")
    a(f"v_cndmask_b32 v55, v57, v55, vcc\nv_cndmask_b32 v56, v58, v56, vcc\nv_add_u32 v57, 2, v59\nv_cndmask_b32 v59, v59, v57, vcc   ; q")
    a(f"v_lshl_add_u32 v57, v59, 2, v55\nv_add_u32 v58, 16, v59\nv_cmp_gt_u32 vcc, 4, v55\ns_nop 1\nv_cndmask_b32 v57, v58, v57, vcc   ; kstep")
    a(f"v_lshlrev_b32 v57, 10, v57\nv_lshl_add_u32 v57, v56, 4, v57\nv_add_u32 v{vHP}, s{sT}, v57")
    a(f"s_lshr_b32 s{sT}, s{sJ}, 2\ns_add_u32 s{sT}, s{sT}, 1\ns_sub_u32 s{sT+1}, 0, s{sT}\ns_bitcmp1_b32 s{sJ}, 1\ns_cselect_b32 s{sT}, s{sT+1}, s{sT}   ; sigma\ns_cselect_b32 s{sT+6}, 1, 0")
    a(f"s_cselect_b32 s{sT+1}, -1, 1\ns_add_u32 s{sT+1}, s{sT+1}, s{sI}\ns_cmp_gt_u32 s{sT+1}, 31\ns_cselect_b32 s{sHZ}, 1, 0\ns_and_b32 s{sT+1}, s{sT+1}, 31")
    a(f"s_lshr_b32 s{sT+7}, s{sT+1}, 2\ns_mul_i32 s{sT+7}, s{sT+7}, 20480\ns_and_b32 s{sT+1}, s{sT+1}, 3\ns_lshl_b32 s{sT+1}, s{sT+1}, 1\ns_add_u32 s{sT+1}, s{sT+1}, s{sT+6}\ns_lshl_b32 s{sT+1}, s{sT+1}, 7\ns_add_u32 s{sT+7}, s{sT+7}, s{sT+1}\ns_add_u32 s{sT+7}, s{sT+7}, {HALO}")
    a(f"v_add_u32 v54, s{sT}, v53   ; T'\nv_cmp_gt_u32 vcc, 64, v54\nv_lshrrev_b32 v55, 4, v54\nv_and_b32 v56, 15, v54\nv_and_b32 v57, 1, v54   ; tau")
    a(f"s_mov_b64 s[{sMmain}:{sMmain+1}], vcc\ns_not_b64 s[{sMhalo}:{sMhalo+1}], vcc\ns_and_b64 s[{sMmainS}:{sMmainS+1}], vcc, s[{sMr02}:{sMr02+1}]\ns_andn2_b64 s[{sMhaloS}:{sMhaloS+1}], s[{sMr02}:{sMr02+1}], vcc")
    a(f"s_mul_i32 s{sT+1}, s{sI}, {4*TS}\ns_add_u32 s{sT+1}, s{sT+1}, {HS}\nv_mul_u32_u24 v55, {TS}, v55\nv_lshl_add_u32 v55, v56, 4, v55\nv_add_u32 v55, s{sT+1}, v55")
    a(f"s_lshl_b32 s{sT+2}, s{sJ}, 11\nv_lshl_add_u32 v56, v33, 8, v55\nv_lshl_add_u32 v58, v33, 1, v57\nv_lshlrev_b32 v58, 4, v58\nv_add_u32 v58, s{sT+7}, v58\nv_cndmask_b32 v56, v58, v56, vcc\nv_add_u32 v{vSf}, s{sT+2}, v56")
    a(f"s_lshr_b32 s{sT+3}, s{sJ}, 1\ns_add_u32 s{sT+3}, s{sT+3}, 16\ns_lshl_b32 s{sT+3}, s{sT+3}, 10\ns_lshl_b32 s{sT+2}, s{sT+4}, 1\nv_add_u32 v59, s{sT+2}, v36   ; g'")
    a(f"v_lshl_add_u32 v56, v59, 8, v55\nv_lshl_add_u32 v58, v59, 1, v57\nv_lshlrev_b32 v58, 4, v58\nv_add_u32 v58, s{sT+7}, v58\nv_cndmask_b32 v56, v58, v56, vcc\nv_add_u32 v{vSs}, s{sT+3}, v56")
    a(f"v_bfe_u32 v54, v0, 2, 2\nv_lshl_add_u32 v54, v33, 2, v54\nv_lshlrev_b32 v54, 5, v54\nv_and_b32 v55, 3, v0\nv_lshl_add_u32 v54, v55, 3, v54\ns_mul_i32 s{sT}, s{sW}, 2560\ns_add_u32 s{sT}, s{sT}, {LDS_Y}\nv_add_u32 v54, s{sT}, v54")
    if stamps: a("s_memrealtime s[100:101]")
    a(f"M_xp:\nbuffer_load_dword v1, v50, s[{sWS}:{sWS+3}], 0 offen sc1\ns_cmp_eq_u32 s{sBUD}, 0\ns_cbranch_scc1 M_xo\ns_sub_u32 s{sBUD}, s{sBUD}, 1\ns_waitcnt vmcnt(0)\nv_cmp_eq_u32 vcc, 0, v1\ns_cbranch_vccnz M_xp\nM_xo:\ns_waitcnt vmcnt(0)")
    for c in range(5): a(f"ds_read_b64_tr_b16 v[{TMP+2*c}:{TMP+2*c+1}], v54 offset:{512*c}")
    a(f"v_readfirstlane_b32 s{sT}, v1\ns_nop 1\nv_cmp_ne_u32 vcc, s{sT}, v1\ns_nop 3\ns_cmp_lg_u64 vcc, 0\ns_cselect_b32 s{sMODE}, 1, {1 if opt.get('force_slow') else 0}")
    a(f"s_cselect_b32 s{sX1}, {X1}, {X1 if opt.get('force_slow') else XA}\nv_add_u32 v{vX3}, s{sX1}, v{vX3}")
    a("s_waitcnt lgkmcnt(0)")
    a(f"ds_add_u32 v{vFA}, v{vFI} offset:16")
    unpack(YF, TMP, 10)
    unpack(ACC, PK, 10)
    stamp("prolog")
    if stamps: a("s_nop 0")
    a("s_branch M_gate")
    ev = dict(n1=(100, {}), n2=(156, {9: 200}), n3=(256, {16: 276, 23: 300, 31: 320}), n4=(400, {14: 440, 22: TAIL0, 29: 520, 38: 560}),
              f1=(3, 7, 11, 15, 19), f2=(3, 7, 11, 15, 19), f3=(6, 13, 19, 26, 33, 39), f4=tuple(range(3, 48, 4)))
    ev.update(opt.get("ev", {}))
    d4 = opt.get("d4", 12)
    a("M_layer:")
    vm.drain(); lg.drain()
    part_stats(); store_stats(STX)
    unpack(ACC, PK, 10)
    poll_sent(vSTr, f"s{sT}", STL)
    a("M_gate:")
    stamp('stx polled')
    fin_stats16(); mean_rstd(vM, vR1)
    a(f"v_mul_f32 v{vNM}, v{vM}, v{vR1}\nv_sub_f32 v{vNM}, 0, v{vNM}")
    for i in range(10):
        x, t, y = ACC+2*i, XAF+2*i, YF+2*i
        a(f"v_pk_fma_f32 v[{t}:{t+1}], v[{x}:{x+1}], {bc(vR1)}, {bc(vNM)} op_sel_hi:[1,0,0]")
        a(f"v_pk_fma_f32 v[{t}:{t+1}], v[{t}:{t+1}], v[{y}:{y+1}], v[{x}:{x+1}]")
    pack16(XAF); store_slice(sXA)
    stamp('stored')
    part_stats(); store_stats(STA)
    a(f"v_add_u32 v{vRD}, s{sXA}, v{vT16}")
    vwait('ds'); flag(1)
    unpack(XAF, PK, 10)
    stamp("xa pub")
    poll(vF[0])
    def stl1(): a(sent_load(vSTr, f"s{sT}", STL, 4)); vm.issue('st')
    gemm(20, 0, 5, M16, 4, ACC, bl16(lambda s: vRD), R12, True, *ev['n1'], ev['f1'], mkhooks([(11, stl1)]), {19: ['st']})
    for c in range(5): a(f"ds_read_b128 v[{AB+4*c}:{AB+4*c+3}], v{vCS1} offset:{64*c}")
    late_sent(vSTr, f"s{sT}", STL, 4)
    fin_stats16(); mean_rstd(vM, vR1)
    a(f"v_mul_f32 v3, v3, v{vR1}\nv_mul_f32 v3, v3, v{vR1}\nv_add_f32 v3, {f2h(1e-5)}, v3\nv_rsq_f32 v3, v3\ns_nop 0\nv_mul_f32 v3, v3, v{vR1}")
    gelu_consts(3, vM)
    lwait0()
    gelu(ACC, AB, PK, 10)
    swap16()
    mstore([f"s_mov_b64 exec, s[{sMmain}:{sMmain+1}]",
            f"buffer_store_dwordx4 v[{PK}:{PK+3}], v{vSf}, s[{sWS}:{sWS+3}], 0 offen {{m}}",
            f"buffer_store_dwordx4 v[{PK+4}:{PK+7}], v{vSf}, s[{sWS}:{sWS+3}], 0 offen offset:1024 {{m}}",
            f"s_mov_b64 exec, s[{sMmainS}:{sMmainS+1}]",
            f"buffer_store_dwordx4 v[{SW}:{SW+3}], v{vSs}, s[{sWS}:{sWS+3}], 0 offen {{m}}"], 'ds', sMODE if opt.get('hs0') else sMODEH)
    stamp('stored')
    a(f"s_cmp_eq_u64 s[{sMhalo}:{sMhalo+1}], 0\ns_cbranch_scc1 M_nohalo")
    a(f"s_mov_b64 exec, s[{sMhalo}:{sMhalo+1}]\ns_cmp_eq_u32 s{sHZ}, 0\ns_cbranch_scc1 M_hnz\ns_nop 1")
    for r in list(range(PK, PK+8)) + list(range(SW, SW+4)): a(f"v_mov_b32 v{r}, 0")
    a("M_hnz:")
    a(f"buffer_store_dwordx4 v[{PK}:{PK+3}], v{vSf}, s[{sWS}:{sWS+3}], 0 offen sc1\nbuffer_store_dwordx4 v[{PK+4}:{PK+7}], v{vSf}, s[{sWS}:{sWS+3}], 0 offen offset:1024 sc1")
    a(f"s_mov_b64 exec, s[{sMhaloS}:{sMhaloS+1}]\nbuffer_store_dwordx4 v[{SW}:{SW+3}], v{vSs}, s[{sWS}:{sWS+3}], 0 offen sc1")
    a(f"s_mov_b64 exec, -1\ns_waitcnt vmcnt(3)\ns_branch M_hpub")
    a(f"M_nohalo:\ns_mov_b64 exec, -1\ns_waitcnt vmcnt(0)\nM_hpub:")
    flag(2)
    a(f"v_mul_f32 v{vNM}, v{vM}, v{vR1}\nv_sub_f32 v{vNM}, 0, v{vNM}")
    for i in range(10): a(f"v_pk_fma_f32 v[{ACC+2*i}:{ACC+2*i+1}], v[{XAF+2*i}:{XAF+2*i+1}], {bc(vR1)}, {bc(vNM)} op_sel_hi:[1,0,0]")
    stamp("h pub")
    poll(vF[1])
    a(f"s_cmp_eq_u32 s{sBND}, 0\ns_cbranch_scc1 M_nohp")
    poll_sent(vHP, "0", STL)
    a("M_nohp:")
    gemm(20, 100, 5, M16, 4, ACC, bl16(lambda s: vH[s>>2] if s < 16 else vH[s-16]), R12, False, *ev['n2'], ev['f2'])
    a("s_nop 3")
    pack16(ACC); store_slice(sX1)
    stamp('stored')
    part_stats(); store_stats(ST1)
    vwait('ds'); flag(3)
    unpack(ACC4, PK, 10)
    for i in range(10): a(f"v_pk_add_f32 v[{ACC4+2*i}:{ACC4+2*i+1}], v[{ACC4+2*i}:{ACC4+2*i+1}], v[{XAF+2*i}:{XAF+2*i+1}]")
    stamp("x1 pub")
    poll(vF[2])
    def stl3(): a(sent_load(vSTr3, f"s{sT}", STL, 8)); vm.issue('st'); vm.issue('st')
    bl3 = lambda s, r: f"buffer_load_dwordx4 v[{r}:{r+3}], v{vX3}, s[{sWS}:{sWS+3}], s{sK+(s>>3)} offen offset:{(s&7)*512} sc1"
    gemm(40, 200, 3, M32, 16, ACC3, bl3, R10 + [AB+24, AB+28], True, *ev['n3'], ev['f3'], mkhooks([(29, stl3)]), {39: ['st']})
    def csread(t):
        for q in range(4): a(f"ds_read_b128 v[{AB+16*(t&1)+4*q}:{AB+16*(t&1)+4*q+3}], v{vCS3} offset:{128*t+32*q}")
    def hstore(t):
        L = [f"buffer_store_dwordx4 v[{PK+8*t+4*P}:{PK+8*t+4*P+3}], v{vH3w}, s[{sWS}:{sWS+3}], s{sK+4*t} offen offset:{512*P} {{m}}" for P in range(2)]
        if opt.get('hst', 'sc1') == 'mode': mstore(L, ('h', t))
        else:
            for x in L: a(x.replace("{m}", opt.get('hst', 'sc1'))); vm.issue(('h', t))
    csread(0); csread(1)
    late_sent(vSTr3, f"s{sT}", STL, 8)
    fin_stats32(); mean_rstd(vM, vR1); gelu_consts(vR1, vM)
    lwait0()
    gelu(ACC3, AB, PK, 8); csread(2); hstore(0)
    gelu(ACC3+16, AB+16, PK+8, 8); hstore(1)
    vwait(('h', 0)); flag(4)
    stamp('Ha pub')
    lwait0()
    g0, g1 = opt.get('gsplit', (2, 4))
    gelu(ACC3+32, AB, PK+16, g0)
    poll_issue(vF[3])
    gelu(ACC3+32+2*g0, AB+2*g0, PK+16+g0, g1)
    vwait('pl'); poll_check(vF[3], 4)
    stamp('polled')
    R4 = (R10 + [ACC3+4*i for i in range(8)])[:d4+1]
    bl4 = bl16(lambda s: vH4)
    for s_ in range(d4): bissue(bl4, s_, R4)
    gelu(ACC3+32+2*(g0+g1), AB+2*(g0+g1), PK+16+g0+g1, 8-g0-g1)
    vwait(('h', 1)); flag(5)
    hstore(2)
    stamp("H pub")
    assert d4 <= 16
    kb, kc = 16-d4, 32-d4
    pb, pc, kf = opt.get("pb", 2), opt.get("pc", 4), opt.get("kf", 8)
    hk = [(max(kb-pb, 0), lambda: poll_issue(vF[3])), (kb, lambda: poll_check(vF[3], 5)),
          (kf, lambda: flag(6)), (kc-pc, lambda: poll_issue(vF[3])), (kc, lambda: poll_check(vF[3], 6))]
    wts = {kb: ['pl']}
    wts.setdefault(kf, []).append(('h', 2)); wts.setdefault(kc, []).append('pl')
    gemm(48, 320, 5, M16, 4, ACC4, bl4, R4, False, *ev['n4'], ev['f4'], mkhooks(hk), wts, pre=True)
    a("s_nop 3")
    for i in range(10): a(f"v_cvt_pk_bf16_f32 v{PK+i}, v{ACC4+2*i}, v{ACC4+2*i+1}")
    stamp("G4 cvt")
    a(f"s_cmp_eq_u32 s{sLAYER}, 1\ns_cbranch_scc1 M_final\ns_mov_b32 s{sLAYER}, 1\ns_mov_b32 s{sPH}, 6\ns_mov_b32 s{sMODEH}, s{sMODE}\ns_add_u32 s{sSN}, s{sSN}, {SD}")
    a(f"s_cmp_lg_u32 s{sMODE}, 0\ns_cselect_b32 s{sT}, {hex(LD & 0xffffffff)}, 0\ns_cselect_b32 s{sXA}, {XA2}, {XA}\ns_add_u32 s{sX1}, s{sX1}, s{sT}\nv_mov_b32 v1, s{sT}\nv_mov_b32 v3, {SD}\ns_mov_b32 s{sT+1}, {SN0}")
    for r in (vX3, vH3w, vH4): a(f"v_add_u32 v{r}, s{sT}, v{r}")
    a(f"v_add_u32 v{vHP}, {SD}, v{vHP}\nv_add_u32 v{vFA}, 4, v{vFA}\nv_add_u32 v{vLA}, 4, v{vLA}")
    for r in vH + [vSf, vSs]: a(f"v_cmp_le_u32 vcc, s{sT+1}, v{r}\ns_nop 1\nv_cndmask_b32 v{TMP}, v1, v3, vcc\nv_add_u32 v{r}, v{r}, v{TMP}")
    if stamps:
        while (len(snames)-2) % 4: stamp('pad')
    a("s_branch M_layer")
    a("M_final:")
    for c in range(5): a(f"buffer_store_dwordx2 v[{PK+2*c}:{PK+2*c+1}], v{vOut}, s[{sOUT}:{sOUT+3}], 0 offen offset:{32*c}")
    if stamps:
        a("s_waitcnt vmcnt(0) lgkmcnt(0)")
        nl = len(snames)
        while snames[-1] == 'pad': snames.pop()
        stamp('end'); a("s_memtime s[94:95]\ns_waitcnt lgkmcnt(0)"); stamp('x'); stamp('x')
        gen_M.nl = nl
        a(f"s_sub_u32 s94, s94, s92\nv_writelane_b32 v255, s94, 61\nv_writelane_b32 v255, s{sMODE}, 62\nv_writelane_b32 v255, s{sBUD}, 63")
        a(f"s_lshl_b32 s{sT}, s2, 2\ns_add_u32 s{sT}, s{sT}, s{sW}\ns_lshl_b32 s{sT}, s{sT}, 8\ns_add_u32 s{sT}, s{sT}, 0x3000000\nv_lshlrev_b32 v1, 2, v0")
        a(f"buffer_store_dword v255, v1, s[{sWS}:{sWS+3}], s{sT} offen")
    a("s_endpgm")
    for o in ool: a(o)
    a("M_loader:")
    if opt.get('lprio', 3): a(f"s_setprio {opt.get('lprio', 3)}")
    a(f"s_sub_u32 s{sW}, s{sW}, 4\ns_lshl_b32 s44, s{sW}, 10\nv_add_u32 v1, s44, v{vL[0]}")
    a(f"v_add_u32 v{vL[0]}, s44, v{vL[0]}\nv_add_u32 v{vL[1]}, 0x10000, v{vL[0]}\nv_add_u32 v{vL[2]}, 0x20000, v{vL[0]}")
    a("s_mov_b32 s26, s3")
    if opt.get('fake_w'): a(f"s_mov_b32 s3, 0\ns_mov_b32 s27, s{sJ}\ns_mov_b32 s{sJ}, 0")
    a(f"s_mul_i32 s{sSEG}, s{sJ}, 102400\ns_add_u32 s{sSEG+1}, s{sSEG}, {WP2}\ns_add_u32 s{sSEG}, s{sSEG}, {WP1}\ns_mul_i32 s{sSEG+2}, s3, 122880\ns_add_u32 s{sSEG+2}, s{sSEG+2}, {WP3}\ns_mul_i32 s{sSEG+3}, s{sJ}, 245760\ns_add_u32 s{sSEG+3}, s{sSEG+3}, {WP4}")
    if opt.get('fake_w'): a(f"s_mov_b32 s{sJ}, s27")
    a(f"s_lshl_b32 s45, s{sI}, 2\ns_add_u32 s45, s45, s{sW}   ; tile16\ns_mul_i32 s46, s45, {TS}\ns_lshl_b32 s47, s{sJ}, 11\ns_add_u32 s47, s47, s46")
    a(f"s_lshr_b32 s24, s{sJ}, 1\ns_add_u32 s24, s24, 16\ns_lshl_b32 s24, s24, 10\ns_and_b32 s25, s{sJ}, 1\ns_lshl_b32 s25, s25, 9\ns_add_u32 s24, s24, s25\ns_add_u32 s24, s24, s46\ns_sub_u32 s24, s24, s47\ns_sub_u32 s24, s24, 2048")
    a(f"v_subrev_u32 v8, 44, v0\nv_cmp_le_u32 vcc, 44, v0\nv_mov_b32 v10, 0\nv_mov_b32 v11, {HS-XA}\nv_cndmask_b32 v8, v0, v8, vcc\nv_cndmask_b32 v10, v10, v11, vcc")
    a(f"v_cmp_le_u32 vcc, 16, v8\nv_lshlrev_b32 v9, 7, v8\nv_mov_b32 v11, s24\nv_add_u32 v9, s47, v9\nv_cndmask_b32 v11, 0, v11, vcc\nv_add_u32 v9, v9, v11\nv_add_u32 v10, v10, v9")
    a(f"v_subrev_u32 v8, 20, v0\nv_cmp_gt_u32 vcc, 24, v8\nv_lshrrev_b32 v11, 3, v8\nv_and_b32 v8, 7, v8\nv_lshlrev_b32 v11, 17, v11\nv_lshl_add_u32 v8, v8, 7, v11\ns_lshl_b32 s45, s45, 10\ns_add_u32 s45, s45, {SN0}\nv_add_u32 v8, s45, v8")
    a(f"v_cndmask_b32 v2, {'v10' if opt.get('hs0') == 'init' else 'v9'}, v8, vcc\nv_mov_b32 v249, v10\nv_add_u32 v8, {SD}, v8\nv_cndmask_b32 v3, v10, v8, vcc")
    a(f"v_min_u32 v8, 47, v0\nv_cmp_le_u32 vcc, 24, v8\nv_subrev_u32 v9, 24, v8\ns_lshr_b32 s45, s{sI}, 1\ns_lshl_b32 s45, s45, 2\ns_add_u32 s45, s45, s{sW}\ns_mul_i32 s45, s45, {2*HTS}\nv_cndmask_b32 v8, v8, v9, vcc\nv_mov_b32 v9, {HTS}\nv_cndmask_b32 v9, 0, v9, vcc")
    a(f"v_lshrrev_b32 v10, 3, v8\nv_and_b32 v8, 7, v8\nv_lshlrev_b32 v10, 14, v10\nv_lshl_add_u32 v8, v8, 7, v10\nv_add_u32 v8, v8, v9\ns_lshl_b32 s46, s26, 10\ns_add_u32 s45, s45, s46\ns_add_u32 s45, s45, {H}\nv_add_u32 v248, s45, v8")
    a("s_waitcnt lgkmcnt(0)")
    srd(a, sWS, sT, WS_BYTES)
    a(f"v_add_u32 v{vFA}, 8, v{vFA}\ns_mov_b32 s30, s{sH80}\ns_mov_b32 s31, s{sH80}\ns_mov_b32 s32, 0\ns_mov_b32 s33, 0\ns_mov_b32 s{sBUD}, 4000000")
    STASH = 8
    stash = opt.get("stash", [(0, RING), (TAIL0, 560)])
    sslot = {}
    for x, y in stash:
        for p in range(x, y, 4): sslot[p] = len(sslot)
    assert len(sslot) <= 60
    def cut(x, y, step):
        r = []
        while x < y:
            e = min(y, x+step)
            for b in [b for sg in SEG for b in sg] + [b for sg in stash for b in sg] + levels:
                if x < b < e: e = b
            r.append((x, e)); x = e
        return r
    dp = dict(init=10, init2=3, w2=3, w3h=3, w3t=2, w4h=4, w4t=3, nxt=4); dp.update(opt.get("dp", {}))
    body = [(c, dp['w2']) for c in cut(RING, 200, 20)] + [(c, dp['w3h']) for c in cut(200, 256, 20)] + [(c, dp['w3t']) for c in cut(256, 320, 20)] \
         + [(c, dp['w4h']) for c in cut(320, TAIL0, 20)] + [(c, dp['w4t']) for c in cut(TAIL0, 560, 20)]
    wrap = 560 % RING
    i0 = opt.get('init0', 40)
    sched = [(0, c, dp['init']) for c in cut(0, i0, 40)] + [(0, c, dp['init2']) for c in cut(i0, RING, 20)] + [(0, c, d) for c, d in body] \
          + [(1, c, dp['nxt']) for c in (cut(0, RING, 40) if (0 in sslot and opt.get('late_restore', True)) else cut(wrap, RING, 20) + cut(0, wrap, 20))] + [(1, c, d) for c, d in body]
    def free_req(layer, x, y):
        if y > RING: lay, pos = layer, y - RING
        elif layer == 0: return ('y', 1) if y > i0 else None
        elif x in sslot and opt.get('late_restore', True): lay, pos = 0, 560
        else: lay, pos = 0, max(p + RING*((559-p)//RING) + 1 for p in range(x, y))
        return lay, [i+1 for i, f in enumerate(frees) if f >= pos][0]
    landed = [set(), set()]; pub = [0, 0]
    def target(layer, ls):
        n = 0
        lo = 0
        for lv in levels:
            if all(p in ls for p in range(0, lv, 4)): n += 1
            else: break
        return n
    def publish(layer, newset):
        t = target(layer, newset)
        if t > pub[layer]:
            l = a.label("M_pb")
            a(f"s_cmp_ge_u32 s{32+layer}, {t}\ns_cbranch_scc1 {l}\ns_mov_b32 s{32+layer}, {t}")
            for _ in range(t - pub[layer]): a(f"ds_add_u32 v{vFA}, v{vFI} offset:{4*layer}")
            a(f"{l}:")
        return t
    def lds_op(op, x, y):
        for p in range(x, y, 4):
            v, off = lds_a(p); r = STASH + 4*sslot[p]
            a(f"ds_read_b128 v[{r}:{r+3}], v{v} offset:{off}" if op == 'r' else f"ds_write_b128 v{v}, v[{r}:{r+3}] offset:{off}")
    def touch(v):
        a(f"buffer_load_dword v7, v{v}, s[{sWS}:{sWS+3}], 0 offen {opt.get('tfl', 'sc1') if v == 2 else 'sc1'}")
    def settle(pend, nyoung):
        if pend is None: return
        lay, x, y = pend
        a(f"s_waitcnt vmcnt({nyoung})")
        landed[lay] |= set(range(x, y, 4)); pub[lay] = publish(lay, landed[lay])
        if lay == 0 and x in sslot: lds_op('r', x, y); a("s_waitcnt lgkmcnt(0)")
    a(f"s_lshl_b32 s45, s{sW}, 6\nv_add_u32 v8, s45, v0\nv_min_u32 v8, 175, v8\nv_cmp_le_u32 vcc, 80, v8\ns_mul_i32 s45, s{sJ}, 320\ns_add_u32 s45, s45, {CS1}\ns_mul_i32 s46, s26, 384\ns_add_u32 s46, s46, {CS3-320}")
    a(f"v_mov_b32 v9, s45\nv_mov_b32 v10, s46\nv_cndmask_b32 v9, v9, v10, vcc\nv_mov_b32 v10, {D*4}\nv_mov_b32 v11, {F*4}\nv_cndmask_b32 v10, v10, v11, vcc\nv_lshl_add_u32 v9, v8, 2, v9\nv_lshlrev_b32 v8, 2, v8\nv_add_u32 v8, {LDS_CS}, v8")
    a("s_waitcnt lgkmcnt(0)\ns_barrier")
    touch(2)
    for n in range(20): a(f"buffer_load_dword v{228+n}, v9, s[{sWS}:{sWS+3}], 0 offen\nv_add_u32 v9, v9, v10")
    pend = None; seen = {0: 0, 1: 0, 'y': 0}
    tpos = opt.get("touch_at", 520)
    for layer, (x, y), depth in sched:
        fr = free_req(layer, x, y)
        if fr and fr[1] > seen[fr[0]]:
            w, n = fr; seen[w] = n
            off = {0: 0, 1: 4, 'y': 16}[w]; sc = {0: 30, 1: 31, 'y': 34}[w]
            go, sp = a.label("M_go"), a.label("M_fs")
            test = f"s_sub_u32 s35, s{sc}, {hex(n*0x01010101)}\ns_and_b32 s35, s35, s{sH80}\ns_cmp_eq_u32 s35, s{sH80}\ns_cbranch_scc1 {go}"
            if w != 'y': a(test)
            if pend is not None:
                a(f"ds_read_b32 v{vLN}, v{vLA} offset:{off}\ns_waitcnt lgkmcnt(0)\nv_readfirstlane_b32 s{sc}, v{vLN}\ns_nop 0\n{test}")
                a("s_waitcnt vmcnt(0)"); publish(pend[0], landed[pend[0]] | set(range(pend[1], pend[2], 4)))
            a(f"{sp}:\nds_read_b32 v{vLN}, v{vLA} offset:{off}\ns_cmp_eq_u32 s{sBUD}, 0\ns_cbranch_scc1 {go}\ns_sub_u32 s{sBUD}, s{sBUD}, 1\ns_waitcnt lgkmcnt(0)\nv_readfirstlane_b32 s{sc}, v{vLN}\ns_nop 0\n{test}\ns_branch {sp}\n{go}:")
        if any(u <= x < v for u, v in opt.get('skip', [])):
            settle(pend, 0); pend = None
            landed[layer] |= set(range(x, y, 4)); pub[layer] = publish(layer, landed[layer])
            continue
        if layer == 1 and x in sslot:
            settle(pend, 0); pend = None
            lds_op('w', x, y); a("s_waitcnt lgkmcnt(0)")
            landed[1] |= set(range(x, y, 4)); pub[1] = publish(1, landed[1])
            continue
        k = [i for i,(u,v) in enumerate(SEG) if u <= x < v][0]
        n = (y-x)//4
        l = a.label("M_ld")
        a(f"s_add_u32 s43, s{sSEG+k}, {(x-SEG[k][0])*1024}\ns_add_u32 s40, s44, {(x%RING)*1024}\ns_mov_b32 s41, {n}\n{l}:")
        a(f"s_mov_b32 m0, s40\ns_add_u32 s40, s40, 4096\ns_cmp_ge_u32 s40, {RING*1024}\ns_cselect_b32 s42, {RING*1024}, 0\ns_sub_u32 s40, s40, s42\ns_waitcnt vmcnt({depth-1})")
        a(f"buffer_load_dwordx4 v1, s[{sWS}:{sWS+3}], s43 offen lds\ns_add_u32 s43, s43, 4096\ns_sub_u32 s41, s41, 1\ns_cmp_lg_u32 s41, 0\ns_cbranch_scc1 {l}")
        if layer == 0 and x == 0:
            a(f"s_waitcnt vmcnt({n})")
            for k2 in range(1, 20): a(f"v_add_f32 v228, v228, v{228+k2}")
            a(f"ds_write_b32 v8, v228\ns_waitcnt lgkmcnt(0)")
        settle(pend, n); pend = (layer, x, y)
        if layer == 0 and opt.get('hs0') == 'late' and x <= opt.get('hs0_at', 100) < y: touch(249); settle(pend, 1); pend = None
        if layer == 0 and x <= tpos < y: touch(3); settle(pend, 1); pend = None
        if x <= opt.get("htouch_at", 260) < y and opt.get('hst', 'sc1') == 'mode': touch(248); settle(pend, 1); pend = None
    settle(pend, 0)
    assert pub == [len(levels), len(levels)], (pub, levels)
    a("M_end:\ns_endpgm")
```

```python
KVT  = 0x0000000
import os
TS   = int(os.environ.get("TS", 21504))
HTS  = int(os.environ.get("HTS", 50176))
Y    = 0x0300000
WP1  = 0x0580000
WP2  = WP1 + 0xC8000
WP3  = WP2 + 0xC8000
WP4  = WP3 + 0x1E0000
CS1  = WP4 + 0x1E0000
CS3  = CS1 + 20*640*4
FLAGS= CS1 + 0x2B000
XID  = FLAGS + 0x1000
XA   = KVT
L0   = 0x1B00000
LD   = -0x1000000
XA2  = 0x1700000
X1   = L0
HS   = L0 + 0x300000
H    = HS + 128*TS
SN0  = H + 128*HTS
SD   = 0x88000
STX  = SN0
STA  = SN0 + 0x20000
ST1  = SN0 + 0x40000
HALO = SN0 + 0x60000
FILL1 = (SN0 - HS)//1024
FILLN = FILL1 + (2*SD - 0x20000)//1024
WS_BYTES = 0x10000000
S, D, F = 2048, 640, 1536

def kmap640(s, g, jj):
    if s < 16:
        return 80*(s>>1) + 32*(s&1) + 16*(jj>>2) + 4*g + (jj&3)
    m = s-16
    return 80*(2*m + (g>>1)) + 64 + 8*(g&1) + jj
def kmap1536(s, g, jj):
    return 96*(s&15) + 32*(s>>4) + 16*(g>>1) + 8*(jj>>2) + 4*(g&1) + (jj&3)
```

```python
import sys, ast
from asmlib import *
from layout import *
import gen_pc, gen_m
def build(**opt):
    a = Asm()
    a(f"; @launch kernel=prep_kernel grid=({gen_pc.P_GRID},1,1) block=({gen_pc.P_BLOCK},1,1) lds={gen_pc.P_LDS}")
    a(f"; @launch kernel=conv_kernel grid=({gen_pc.C_GRID},1,1) block=({gen_pc.C_BLOCK},1,1) lds={gen_pc.C_LDS}")
    a(f"; @launch kernel=main_kernel grid=(256,1,1) block=(512,1,1) lds={gen_m.M_LDS}")
    a('.amdgcn_target "amdgcn-amd-amdhsa--gfx950"\n.text')
    gen_pc.gen_P(a, **opt); gen_pc.gen_C(a, **opt); gen_m.gen_M(a, **opt)
    a('code_end:')
    a('.section .rodata,"a"')
    a(kernel_desc("prep_kernel", 104, 80, 104)); a(kernel_desc("conv_kernel", 232, 80, 232)); a(kernel_desc("main_kernel", 256, 102, 256))
    return a.text()
B = dict(kf=12, d4=10, pb=1, dp=dict(w4t=5, w4h=5, w2=6, w3h=2, w3t=4, init2=6), ntq="")
open("../t_v4.s","w").write(build(**B))
open("../t_v4_nont.s","w").write(build(**dict(B, nt="", ntk="", hpre=None)))
```
